```python
import torch

def _softmax(x, axis=-1):
    return torch.softmax(x, dim=axis)
def _gelu(x):
    return torch.nn.functional.gelu(x, approximate="tanh")
def _silu(x):
    return torch.nn.functional.silu(x)
def _sigmoid(x):
    return torch.sigmoid(x)
def _layernorm(x, axis=-1, eps=1e-5):
    m = x.mean(dim=axis, keepdim=True)
    v = x.var(dim=axis, keepdim=True, unbiased=False)
    return (x - m) / torch.sqrt(v + eps)
def _scatter_add(tgt, idx, src, axis=0):
    return tgt.clone().index_add_(axis, idx, src)
def _segment_sum(src, seg, n):
    out = torch.zeros((n,) + src.shape[1:], dtype=src.dtype)
    return out.index_add_(0, seg, src)
def _pad(x, pw):
    flat = tuple(v for pair in reversed(pw) for v in pair)
    return torch.nn.functional.pad(x, flat)

kernel_name = 'interleave_layers__linear_attn_block__glu_gated_glu__prompt'

def setup_inputs():

    _w = (lambda a: (lambda t: t.to(torch.bfloat16) if t.is_floating_point() else t)(torch.as_tensor(a)))
    def _A_setup():
        B, S, D = 1, 2048, 448
        return {
            "x": _w((lambda *s: torch.randn(*s, dtype=torch.bfloat16) * 0.05)(B, S, D)),
            "wqkv": _w((lambda *s: torch.randn(*s, dtype=torch.bfloat16) * 0.1)(D, 3 * D)),
            "wo": _w((lambda *s: torch.randn(*s, dtype=torch.bfloat16) * 0.05)(D, D)),
        }
    _A_in = _A_setup()

    def _B_setup():
        B, S, D, F = 1, 2048, 448, 1792
        return {
            "x": _w((lambda *s: torch.randn(*s, dtype=torch.bfloat16) * 0.05)(B, S, D)),
            "w_gate": _w((lambda *s: torch.randn(*s, dtype=torch.bfloat16) * 0.05)(D, F)),
            "w_up": _w((lambda *s: torch.randn(*s, dtype=torch.bfloat16) * 0.05)(D, F)),
            "w_down": _w((lambda *s: torch.randn(*s, dtype=torch.bfloat16) * 0.05)(F, D)),
        }
    _B_in = _B_setup()

    return {
        "A_x": _A_in["x"],
        "A_wqkv": _A_in["wqkv"],
        "A_wo": _A_in["wo"],
        "B_x": _B_in["x"],
        "B_w_gate": _B_in["w_gate"],
        "B_w_up": _B_in["w_up"],
        "B_w_down": _B_in["w_down"],
    }

def reference(A_x, A_wqkv, A_wo, B_x, B_w_gate, B_w_up, B_w_down):
    def _A_ref(x, wqkv, wo):
        B, S, D = x.shape
        H = 16; Dh = D // H
        qkv = (lambda x, *d: x.permute(*d))((x @ wqkv).reshape(B, S, 3, H, Dh), 2, 0, 3, 1, 4)
        q, k, v = qkv[0], qkv[1], qkv[2]
        phi = lambda t: torch.where(t > 0, t + 1, torch.exp(t)) + 1e-6
        pq, pk = phi(q), phi(k)
        kv = torch.einsum("bhsd,bhse->bhde", pk, v)
        z = torch.einsum("bhsd->bhd", pk)
        num = torch.einsum("bhqd,bhde->bhqe", pq, kv)
        den = torch.einsum("bhqd,bhd->bhq", pq, z)[..., None] + 1e-6
        o = num / den
        return (lambda x, *d: x.permute(*d))(o, 0, 2, 1, 3).reshape(B, S, D) @ wo

    def _B_ref(x, w_gate, w_up, w_down):
        g = torch.einsum("bsd,df->bsf", x, w_gate)
        u = torch.einsum("bsd,df->bsf", x, w_up)
        h = _sigmoid(g) * u
        return torch.einsum("bsf,fd->bsd", h, w_down)

    x = A_x
    x = x + _A_ref(_layernorm(x, axis=-1), A_wqkv, A_wo)
    x = x + _B_ref(_layernorm(x, axis=-1), B_w_gate, B_w_up, B_w_down)
    x = x + _A_ref(_layernorm(x, axis=-1), A_wqkv, A_wo)
    x = x + _B_ref(_layernorm(x, axis=-1), B_w_gate, B_w_up, B_w_down)
    return x
```

```python
import re

TRANS = ("v_exp_f32", "v_log_f32", "v_rcp_f32", "v_rsq_f32", "v_sqrt_f32", "v_sin_f32", "v_cos_f32")

def vr(b, n=1):
    return f"v{b}" if n == 1 else f"v[{b}:{b+n-1}]"
def ar(b, n=1):
    return f"a{b}" if n == 1 else f"a[{b}:{b+n-1}]"
def sr(b, n=1):
    return f"s{b}" if n == 1 else f"s[{b}:{b+n-1}]"
def R(b, n=4):
    return vr(b, n) if b < 256 else ar(b - 256, n)

_tok = re.compile(r"^-?(?:abs\()?([vas])(?:(\d+)|\[(\d+):(\d+)\])\)?$")
def regs_of(tok):
    tok = tok.strip()
    if tok == "vcc": return ("s", {106, 107})
    if tok == "exec": return ("s", {126, 127})
    if tok == "m0": return ("s", {124})
    m = _tok.match(tok)
    if not m: return (None, set())
    k = m.group(1)
    lo = int(m.group(2) if m.group(2) is not None else m.group(3))
    hi = int(m.group(4)) if m.group(4) is not None else lo
    s = set(range(lo, hi + 1))
    if k == "a": return ("v", {x + 256 for x in s})
    return (k, s)

class Ins:
    __slots__ = ("text", "op", "cls", "vdef", "vuse", "sdef", "suse", "srcc", "srcab", "states", "wide_store", "label")
    def __init__(self, text):
        self.text = text
        t = text.split(";")[0].strip()
        self.label = t.endswith(":") or t.startswith(".") or t == ""
        self.vdef = set(); self.vuse = set(); self.sdef = set(); self.suse = set()
        self.srcc = set(); self.srcab = set(); self.wide_store = set()
        self.states = 1; self.cls = "other"; self.op = ""
        if self.label:
            self.states = 0; return
        parts = t.split(None, 1)
        op = self.op = parts[0]
        rest = parts[1] if len(parts) > 1 else ""
        ops = []
        for o in rest.split(","):
            o = o.strip()
            if not o: continue
            ops.append(o.split()[0])
        mods = rest.split()
        def use(tok):
            k, s = regs_of(tok)
            if k == "v": self.vuse |= s
            elif k == "s": self.suse |= s
        def deff(tok):
            k, s = regs_of(tok)
            if k == "v": self.vdef |= s
            elif k == "s": self.sdef |= s
        if op == "s_nop":
            self.states = int(ops[0], 0) + 1; self.cls = "salu"
        elif op.startswith("v_mfma"):
            self.cls = "mfma"
            deff(ops[0]); use(ops[1]); use(ops[2]); use(ops[3])
            self.srcab = regs_of(ops[1])[1] | regs_of(ops[2])[1]
            k, s = regs_of(ops[3]); self.srcc = s if k == "v" else set()
        elif op.startswith("v_"):
            self.cls = "trans" if op.replace("_e32", "").replace("_e64", "") in TRANS else "valu"
            if op.startswith("v_permlane") and "swap" in op:
                for o in ops[:2]: deff(o); use(o)
            elif op.startswith(("v_add_co", "v_sub_co", "v_addc_co", "v_subb_co", "v_subrev_co")):
                deff(ops[0]); deff(ops[1])
                for o in ops[2:]: use(o)
            else:
                deff(ops[0])
                for o in ops[1:]: use(o)
                if op.startswith(("v_fmac", "v_dot2c", "v_pk_fmac", "v_writelane")): use(ops[0])
        elif op.startswith(("buffer_", "global_")):
            self.cls = "vmem"
            islds = "lds" in mods
            if op.startswith("buffer_load"):
                if islds:
                    for o in ops: use(o)
                    self.suse |= {124}
                else:
                    deff(ops[0])
                    for o in ops[1:]: use(o)
            elif op.startswith("global_load"):
                deff(ops[0])
                for o in ops[1:]: use(o)
            else:
                for o in ops: use(o)
                data = ops[0] if op.startswith("buffer_") else ops[1]
                if "x4" in op or "x3" in op: self.wide_store = regs_of(data)[1]
        elif op.startswith("ds_"):
            self.cls = "ds"
            if op.startswith(("ds_read", "ds_bpermute", "ds_permute", "ds_swizzle")):
                deff(ops[0])
                for o in ops[1:]: use(o)
            else:
                for o in ops: use(o)
        elif op.startswith("s_"):
            self.cls = "salu"
            if op.startswith(("s_cmp", "s_cbranch", "s_branch", "s_waitcnt", "s_barrier", "s_endpgm", "s_sleep", "s_setprio", "s_setpc", "s_bitcmp")):
                for o in ops: use(o)
            else:
                if ops: deff(ops[0])
                for o in ops[1:]: use(o)

def required_states(p, c):
    n = 0
    pv = p.cls in ("valu", "trans")
    cv = c.cls in ("valu", "trans")
    if p.cls == "mfma":
        big = "32x32" in p.op
        lat = 12 if big else 8
        if c.cls == "mfma":
            if p.vdef & c.srcab: n = max(n, lat)
            if p.vdef & c.srcc and p.vdef != c.srcc: n = max(n, lat - 2)
            if (p.vdef & c.vdef) and not (p.vdef & c.srcc): n = max(n, lat)
        elif cv or c.cls in ("vmem", "ds"):
            if p.vdef & (c.vuse | c.vdef): n = max(n, lat)
            if cv and (p.srcc & c.vdef): n = max(n, 7 if big else 3)
    if pv:
        if c.cls == "mfma" and (p.vdef & c.vuse): n = max(n, 2)
        if c.cls == "mfma" and (p.sdef & {126, 127}): n = max(n, 4)
        if p.cls == "trans" and cv and c.cls != "trans" and (p.vdef & c.vuse): n = max(n, 1)
        if p.cls == "trans" and c.cls != "valu" and (p.vdef & c.vuse): n = max(n, 1)
        if c.op.startswith("v_permlane") and (p.vdef & c.vuse): n = max(n, 2)
        if c.op.startswith(("v_readfirstlane", "v_readlane")) and (p.vdef & c.vuse): n = max(n, 1)
        if "dpp" in c.text or "quad_perm" in c.text or "row_" in c.text:
            if p.vdef & c.vuse: n = max(n, 2)
        if p.sdef:
            if cv and (p.sdef & c.suse): n = max(n, 2)
            if c.op.startswith("v_cndmask") and "vcc" in c.text and (p.sdef & {106, 107}): n = max(n, 2)
            if c.cls == "vmem" and (p.sdef & c.suse): n = max(n, 5)
            if c.cls == "salu" and (p.sdef & c.suse) and not c.op.startswith("s_cbranch"): n = max(n, 1)
        if p.op.startswith("v_dot") and (p.vdef & (c.vuse | c.vdef)):
            if not (c.op == p.op and not (p.vdef & _dot_ab(c))): n = max(n, 3)
    if p.cls == "vmem" and p.wide_store:
        if (p.wide_store & c.vdef): n = max(n, 2)
    if p.cls == "salu" and (124 in p.sdef) and c.cls == "vmem" and (124 in c.suse): n = max(n, 1)
    if p.cls == "salu" and (p.sdef & {126, 127}) and c.cls == "mfma": n = max(n, 1)
    return n

def _dot_ab(c):
    t = c.text.split(";")[0].split(None, 1)[1].split(",")
    s = set()
    for o in t[1:3]:
        k, r = regs_of(o.strip().split()[0])
        if k == "v": s |= r
    return s

class Asm:
    def __init__(self):
        self.ins = []
        self.vmq = []
        self.lgq = []
        self.nlabel = 0
        self.nops_inserted = 0
        self.tail = []
    def e(self, text):
        c = Ins(text)
        if not c.label:
            need = 0; dist = 0
            for p in reversed(self.ins):
                if dist >= 14: break
                if p.label: continue
                r = required_states(p, c)
                if r > dist: need = max(need, r - dist)
                dist += p.states
            if need > 0:
                self.nops_inserted += 1
                self.ins.append(Ins(f"s_nop {need-1}"))
        self.ins.append(c)
        return c
    def __call__(self, text):
        return self.e(text)
    def label(self, name):
        self.ins.append(Ins(name + ":"))
    def newlabel(self, base="L"):
        self.nlabel += 1
        return f"{base}_{self.nlabel}"
    def comment(self, s):
        self.ins.append(Ins("; " + s))
    def vm(self, text, tag=None):
        self.e(text); self.vmq.append(tag)
    def ds(self, text, tag=None):
        self.e(text); self.lgq.append(tag)
    def _cnt(self, q, tag, mx):
        if tag is None: return None
        if tag == "all":
            n = 0 if q else None
        else:
            idx = [i for i, t in enumerate(q) if t == tag]
            if not idx: return None
            n = len(q) - 1 - idx[-1]
        if n is None: return None
        n = min(n, mx)
        del q[:len(q) - n]
        return n
    def wait(self, vm=None, lg=None):
        a = self._cnt(self.vmq, vm, 63)
        b = self._cnt(self.lgq, lg, 15)
        if a is None and b is None: return 0
        s = "s_waitcnt"
        if a is not None: s += f" vmcnt({a})"
        if b is not None: s += f" lgkmcnt({b})"
        self.e(s)
        return 1
    def state(self):
        return (list(self.vmq), list(self.lgq))
    def set_state(self, st):
        self.vmq = list(st[0]); self.lgq = list(st[1])
    def text(self):
        out = []
        for i in self.ins:
            out.append(i.text if i.label and not i.text.startswith(";") else "  " + i.text)
        return "\n".join(out) + "\n"

def cost_of(text):
    op = text.split()[0]
    if op.replace("_e32", "").replace("_e64", "") in TRANS: return 2
    if op.startswith("v_mfma"): return 2
    return 1
```

```python
import sys, os, struct, collections
sys.path.insert(0, os.path.dirname(os.path.abspath(__file__)))
from asmlib import *

NAME = "interleave_layers__linear_attn_block__glu_gated_glu__prompt"

class Opt:
    noreuse = 0
    stop = 99
    stamps = 0
    force_slow = 0
    budget = 6
    bg1 = 6
    noT = 0
    notouch = 0
    now4 = 0
    pfmode = 3
    x0n = 6
    pfmx = 1
    tmode = 1
    warm = 1
    lead0 = 10
    pfw4 = -1
    w4s3 = 1
    pfw2 = 0
    osc = 0
    touchat = 1
    prepat = 20
    fine = 0
    kvfrom = 5
    noprep = 0
    gat0 = 18
    mxat = 1
    gat = 8
    lead = 10
    bg3 = 3
opt = Opt()

def f32(x): return "0x%08x" % struct.unpack("<I", struct.pack("<f", x))[0]
LOG2E = 1.4426950408889634
LN2 = 0.6931471805599453
BIG = "0x40000000"

EPOCH = 0x0; XINFO = 0x1000; OF = 0x2000; HF = 0x4000; XF = 0x6000
MXF = 0x80000; PART = [0x100000, 0x180000]; OBUF = 0x300000; XBUF = 0x500000
WDF = 0x700000; HBUF = 0x900000; W1F = 0x1000000; INST = 0x1000000; STAMP = 0x8000000
XB = 32768
WS_SIZE = 0x10000000
SL = 28672
T0, T1, T2, SA, RB = 0, SL, 2*SL, 3*SL, 4*SL
MISC = RB + SL; MB = 5120; SMALL = 4096
BLK = 12288
sV, sX, sJ, sHS, sTB = 3, 4, 5, 6, 7
dX0, dWQ, dWO, dWG, dWU, dWD, dOUT, dWS, dWSB, dMX = 8, 12, 16, 20, 24, 28, 32, 36, 40, 44
sHALF = 48; sONES = 50
sE, sTO, sP, sC, sG = 52, 53, 54, 55, 56
sK = {i: 56 + i for i in range(1, 7)}
sLv, sBv, sW1, sW3, sWM, sLM, sW2, sMv, sWID = 63, 64, 65, 66, 67, 68, 69, 70, 71
sFl, sFc = 72, 73
sLN2, sBF1 = 74, 75
sTBO, sCTO = 76, 77
sT = [78, 79, 80, 81, 82, 83]
sNEED = 84; sKA = 84; sXCC = 85; sST = 86; sTAG = 88
sTB3 = 89
sH1, sH2, sHF1, sHF2, sHFc, sHFd, sPS = 90, 91, 92, 93, 94, 95, 96
sBG = 97
sK[7] = 98
sPS2 = 99
vL16, vTr, vTrM1, vL0, vDq, vDo, vDg, vDm, vRow, vLA, vStW, vP8, vPx, vTrA, vPoll = 1,2,3,4,5,6,7,8,9,10,11,12,13,14,15
vTrM2 = vDm
vRES = 16
X = 24
B0, B1, B2 = 136, 168, 200
AF = 216
vXE = 240
vC1, vSD = 244, 245
vA0, vA1, vA2, vA3 = 246, 247, 248, 249
vT = [250, 251, 252, 253, 254, 255]
W4 = 256
CS = 256 + 224
ONES = 256 + 236
JUNK = 256 + 240
ACC4 = [B1, B1 + 16, B2, AF]
GR = B1 + 16

def srd(d): return sr(d, 4)
def MF(d, a, b, c=None):
    cc = "0" if c == 0 else R(d if c is None else c, 16)
    return f"v_mfma_f32_32x32x16_bf16 {R(d,16)}, {R(a,4)}, {R(b,4)}, {cc}"

class Fill:
    def __init__(s, fn, cost=1, earliest=0): s.fn = fn; s.cost = cost; s.earliest = earliest
class Mark(Fill): pass

class G(Asm):
    def __init__(s):
        super().__init__()
        s.mf = 0
        s.fq = collections.deque()
        s.bg = collections.deque(); s.bg_period = 8; s.bg_next = 0
        s.nstamp = 0; s.pending = {}; s.names = []
        s.sc = ""
    def F(s, text, earliest=0): s.fq.append(Fill(lambda: s.e(text), cost_of(text), earliest))
    def _pend(s, tag, d):
        if tag is not None: s.pending[tag] = s.pending.get(tag, 0) + d
    def Fvm(s, text, tag=None, earliest=0):
        s._pend(tag, 1); s.fq.append(Fill(lambda: (s._pend(tag, -1), s.vm(text, tag)), 1, earliest))
    def Fds(s, text, tag=None, earliest=0):
        s._pend(tag, 1); s.fq.append(Fill(lambda: (s._pend(tag, -1), s.ds(text, tag)), 1, earliest))
    def wait(s, vm=None, lg=None):
        while s.pending.get(vm) and s.bg: s.bg_step()
        assert not s.pending.get(vm) and not s.pending.get(lg), (vm, lg)
        return super().wait(vm, lg)
    def Fwait(s, vm=None, lg=None, earliest=0): s.fq.append(Fill(lambda: s.wait(vm, lg), 1, earliest))
    def Ffn(s, fn, cost=1, earliest=0): s.fq.append(Fill(fn, cost, earliest))
    def flush(s):
        while s.fq: s.fq.popleft().fn()
    def mark(s): s.fq.append(Mark(lambda: None, 0, 0))
    def flush_until_mark(s):
        if any(isinstance(f, Mark) for f in s.fq):
            while True:
                f = s.fq.popleft(); f.fn()
                if isinstance(f, Mark): break
    def BG(s, pre, text, tag):
        s._pend(tag, 1); s.bg.append((pre, text, tag))
    def bg_step(s):
        if not s.bg: return 0
        pre, text, tag = s.bg.popleft()
        for t in pre: s.e(t)
        s._pend(tag, -1); s.vm(text, tag)
        return len(pre) + 1
    def bg_flush(s):
        while s.bg: s.bg_step()
    def stream(s, steps):
        for i, (pre, m, post) in enumerate(steps):
            for f in pre: f()
            s.e(m); s.mf += 1
            n0 = len(s.ins)
            for f in post: f()
            used = len(s.ins) - n0
            res = 1 if (i + 1 < len(steps) and steps[i + 1][0]) else 0
            if s.bg and s.mf >= s.bg_next and used + len(s.bg[0][0]) + 1 <= opt.budget - res:
                used += s.bg_step(); s.bg_next = s.mf + s.bg_period
            while s.fq and s.fq[0].earliest <= s.mf and used + s.fq[0].cost <= opt.budget - res:
                f = s.fq.popleft(); n0 = len(s.ins); f.fn()
                used += max(f.cost, len(s.ins) - n0)
    def stamp(s, name=""):
        if not opt.stamps: return
        if len(s.names) == s.nstamp: s.names.append(name)
        s.wait(lg="all")
        s.e(f"{'s_memrealtime' if opt.stamps == 1 else 's_memtime'} {sr(sST,2)}")
        s.e("s_waitcnt lgkmcnt(0)")
        s.e(f"v_writelane_b32 v0, s{sST}, {s.nstamp}")
        s.nstamp += 1
    def barrier(s, vm=None):
        s.wait(vm=vm, lg="all")
        s.e("s_barrier")
    def dma_tile(s, d, vpat, sbase, add, step, m0s, m0add, tag, mode="now", flags=""):
        for i in range(7):
            pre = [f"s_add_u32 m0, s{m0s}, {m0add + i*1024}", f"s_add_u32 s{sBG}, s{sbase}, {add + i*step}"]
            t = f"buffer_load_dwordx4 v{vpat}, {srd(d)}, s{sBG} offen {flags} lds"
            s.BG(pre, t, tag)
            if mode == "now":
                s.bg.rotate(1); s.bg_step()
    def soff(s, rel):
        return ("0" if rel < 4096 else f"s{sK[rel >> 12]}"), rel & 4095
    def poll_loop(s, vaddr, ssoff, width=16):
        L = s.newlabel("Lpoll"); D = s.newlabel("Lpd")
        s.label(L)
        s.e(f"buffer_load_dword v{vPoll}, v{vaddr}, {srd(dWS)}, s{ssoff} offen sc1")
        s.e(f"s_add_u32 s{sTO}, s{sTO}, 1")
        s.e(f"s_cmp_gt_u32 s{sTO}, 0x20000")
        s.e(f"s_cbranch_scc1 {D}")
        s.e("s_waitcnt vmcnt(0)")
        s.e(f"v_subrev_u32 v{vPoll}, s{sNEED}, v{vPoll}")
        s.e(f"v_cmp_le_u32 vcc, {width}, v{vPoll}")
        s.e(f"s_cbranch_vccnz {L}")
        s.label(D)
        s.vmq = []
    def set_need(s, n): s.e(f"s_add_u32 s{sNEED}, s{sE}, {n}")
    def poll_issue(s, vaddr, ssoff, tag):
        s.vm(f"buffer_load_dword v{vPoll}, v{vaddr}, {srd(dWS)}, s{ssoff} offen sc1", tag)
    def poll_check(s, vaddr, ssoff, tag, n):
        Ls = s.newlabel("Lslow"); Lb = s.newlabel("Lback")
        s.set_need(n)
        s.wait(vm=tag)
        s.e(f"v_subrev_u32 v{vPoll}, s{sNEED}, v{vPoll}")
        s.e(f"v_cmp_le_u32 vcc, 16, v{vPoll}")
        s.e(f"s_cbranch_vccnz {Ls}")
        s.label(Lb)
        s.tail += [f"{Ls}:",
                   f"buffer_load_dword v{vPoll}, v{vaddr}, {srd(dWS)}, s{ssoff} offen sc1",
                   f"s_add_u32 s{sTO}, s{sTO}, 1", f"s_cmp_gt_u32 s{sTO}, 0x20000", f"s_cbranch_scc1 {Lb}",
                   "s_waitcnt vmcnt(0)",
                   f"v_subrev_u32 v{vPoll}, s{sNEED}, v{vPoll}", f"v_cmp_le_u32 vcc, 16, v{vPoll}",
                   f"s_cbranch_vccnz {Ls}", f"s_branch {Lb}"]
    def flag_store(s, d, sbase, add, n, vtmp, stmp):
        s.e(f"s_add_u32 s{stmp}, s{sE}, {n}")
        s.e(f"v_mov_b32 v{vtmp}, s{stmp}")
        if add:
            s.e(f"s_add_u32 s{stmp}, s{sbase}, {add}"); sbase = stmp
        s.vm(f"buffer_store_dword v{vtmp}, v{vL0}, {srd(d)}, s{sbase} offen {s.sc}")
    def flush_tail(s):
        for t in s.tail:
            if t.endswith(":"): s.label(t[:-1])
            else: s.ins.append(Ins(t))
        s.tail = []
    def prefetch(s, d, base, nlines, vtmp, stmp, sbase=None, flags=""):
        done = 0
        while done < nlines:
            per = min(64, -(-(nlines - done) // 128))
            s.e(f"s_mul_i32 s{stmp}, s{sWID}, {per*128}")
            s.e(f"s_add_u32 s{stmp}, s{stmp}, {base + done*128}")
            if sbase is not None: s.e(f"s_add_u32 s{stmp}, s{stmp}, s{sbase}")
            s.e(f"v_lshlrev_b32 v{vtmp}, 3, v{vL16}")
            if per < 64: s.e(f"v_min_u32 v{vtmp}, {(per-1)*128}, v{vtmp}")
            s.vm(f"buffer_load_dword {R(JUNK,1)}, v{vtmp}, {srd(d)}, s{stmp} offen {flags}")
            done += per * 128

def pf_rows(g, d, per_row, pitch_lines, first, total, vt0, vt1, st, flags=""):
    e = g.e
    done = 0
    magic = -(-(1 << 19) // per_row)
    while done < total:
        per = min(64, -(-(total - done) // 128))
        e(f"s_mul_i32 s{st}, s{sWID}, {per}")
        if done: e(f"s_add_u32 s{st}, s{st}, {done}")
        e(f"v_lshrrev_b32 v{vt0}, 4, v{vL16}")
        if per < 64: e(f"v_min_u32 v{vt0}, {per-1}, v{vt0}")
        e(f"v_add_u32 v{vt0}, s{st}, v{vt0}")
        if per_row & (per_row - 1) == 0: e(f"v_lshrrev_b32 v{vt1}, {per_row.bit_length()-1}, v{vt0}")
        else:
            e(f"v_mul_u32_u24 v{vt1}, {magic}, v{vt0}"); e(f"v_lshrrev_b32 v{vt1}, 19, v{vt1}")
        e(f"v_mul_u32_u24 v{vt1}, {pitch_lines - per_row}, v{vt1}")
        e(f"v_add_lshl_u32 v{vt0}, v{vt0}, v{vt1}, 7")
        g.vm(f"buffer_load_dword {R(JUNK,1)}, v{vt0}, {srd(d)}, 0 offen offset:{first*128} {flags}")
        done += per * 128

def inst_off(i): return INST * i if opt.noreuse else 0

def cs_block(g, tiles, accs):
    seq = [(t, i) for t in range(len(tiles)) for i in range(7)]
    def rd(n):
        t, i = seq[n]
        va, off, ks, sec, tag = tiles[t]
        def f():
            if i == 0: g.wait(vm=tag)
            b = AF + 4 * (n % 6)
            if sec is None:
                g.ds(f"ds_read_b128 {vr(b,4)}, v{va} offset:{off + i*ks}", f"c{n}")
            else:
                g.ds(f"ds_read_b64_tr_b16 {vr(b,2)}, v{va} offset:{off + i*ks}")
                g.ds(f"ds_read_b64_tr_b16 {vr(b+2,2)}, v{va} offset:{off + i*ks + sec}", f"c{n}")
        return f
    for n in range(3): rd(n)()
    steps = []
    for n in range(len(seq)):
        post = [rd(n + 3)] if n + 3 < len(seq) else []
        steps.append(([lambda n=n: g.wait(lg=f"c{n}")], MF(accs[seq[n][0]], ONES, AF + 4*(n % 6), 0 if seq[n][1] == 0 else None), post))
    g.stream(steps)

def cs_publish(g, accs, off, vtmp, sa=False):
    g.e(f"v_lshrrev_b32 v{vtmp}, 2, v{vL16}"); g.e(f"v_and_b32 v{vtmp}, 0x7c, v{vtmp}"); g.e(f"v_add_u32 v{vtmp}, s{sLv if sa else sMv}, v{vtmp}")
    if sa: g.e(f"v_add_u32 v{vtmp}, {SA}, v{vtmp}")
    for k, a in enumerate(accs):
        g.ds(f"ds_write_b32 v{vtmp}, v{a} offset:{off + 128*k}")

def cs_final(g, items, off, tmp, vtmp, fill, sa=False):
    MB = 7168 if sa else 5120
    MISC = SA if sa else RB + SL
    F = g.F if fill else g.e
    D = g.Fds if fill else g.ds
    for k, (dst, mx) in enumerate(items):
        if k == 0 or mx != items[k-1][1]:
            F(f"v_lshrrev_b32 v{vtmp}, 2, v{vL16}")
            if mx:
                F(f"v_and_b32 v{tmp+4*k}, 64, v{vtmp}"); F(f"v_mul_u32_u24 v{tmp+4*k}, {2*MB//64}, v{tmp+4*k}")
                F(f"v_and_b32 v{vtmp}, 0x3c, v{vtmp}"); F(f"v_add_u32 v{vtmp}, v{vtmp}, v{tmp+4*k}")
            else:
                F(f"v_and_b32 v{vtmp}, 0x7c, v{vtmp}")
            F(f"v_add_u32 v{vtmp}, {MISC}, v{vtmp}")
        offs = (0, 64, MB, MB + 64) if mx else (0, MB, 2*MB, 3*MB)
        for q in range(4):
            D(f"ds_read_b32 v{tmp+4*k+q}, v{vtmp} offset:{off + 128*k + offs[q]}", "csr")
    if fill: g.Fwait(lg="csr", earliest=g.mf + 6)
    else: g.wait(lg="csr")
    n = len(items)
    for k in range(n):
        a = tmp + 4*k
        F(f"v_add_f32 v{a}, v{a}, v{a+1}"); F(f"v_add_f32 v{a+2}, v{a+2}, v{a+3}")
    for k in range(n): F(f"v_add_f32 v{tmp+4*k}, v{tmp+4*k}, v{tmp+4*k+2}")
    for k in range(n): F(f"v_cvt_pk_bf16_f32 v{tmp+4*k+1}, v{tmp+4*k}, v{tmp+4*k}")
    for k in range(n): F(f"v_lshlrev_b32 v{tmp+4*k+1}, 16, v{tmp+4*k+1}")
    for k in range(n): F(f"v_sub_f32 v{tmp+4*k+1}, v{tmp+4*k}, v{tmp+4*k+1}")
    for k in range(n): F(f"v_cvt_pk_bf16_f32 v{tmp+4*k}, v{tmp+4*k}, v{tmp+4*k+1}")
    for k in range(n): F(f"v_accvgpr_write_b32 {R(items[k][0],1)}, v{tmp+4*k}")

def prologue(g):
    e = g.e
    e("s_cmp_ge_u32 s2, 256")
    e("s_cbranch_scc1 L_end")
    if opt.stamps: e(f"{'s_memrealtime' if opt.stamps == 1 else 's_memtime'} s[100:101]")
    e(f"s_load_dwordx16 {sr(sKA,16)}, s[0:1], 0")
    e(f"s_load_dwordx4 s[80:83], s[0:1], 64")
    e(f"v_lshrrev_b32 v{vT[0]}, 6, v0")
    e(f"v_and_b32 v0, 63, v0")
    e(f"v_readfirstlane_b32 s{sV}, v{vT[0]}")
    e(f"v_lshlrev_b32 v{vL16}, 4, v0")
    e(f"s_and_b32 s{sX}, s2, 7")
    e(f"s_lshr_b32 s{sJ}, s2, 3")
    e(f"s_getpc_b64 s[78:79]")
    e(f"s_lshl_b32 s{sWID}, s{sJ}, 2")
    e(f"s_add_u32 s{sWID}, s{sWID}, s{sV}")
    e(f"s_min_u32 s{sP}, s{sWID}, (L_fast_end-{NAME}_kernel)/512-1")
    e(f"s_lshl_b32 s{sP}, s{sP}, 9")
    e(f"v_lshrrev_b32 v{vT[1]}, 1, v{vL16}")
    e(f"v_add_u32 v{vT[1]}, s{sP}, v{vT[1]}")
    g.vm(f"global_load_dword {R(JUNK,1)}, v{vT[1]}, s[78:79]", "warm")
    e(f"s_and_b32 s{sHS}, s{sJ}, 15")
    e(f"s_lshr_b32 s{sG}, s{sJ}, 4")
    e(f"s_lshl_b32 s{sP}, s{sX}, 1")
    e(f"s_add_u32 s{sG}, s{sG}, s{sP}")
    e(f"s_lshl_b32 s{sTB}, s{sG}, 2")
    e(f"s_add_u32 s{sTB}, s{sTB}, s{sV}")
    e(f"v_lshrrev_b32 v{vT[0]}, 2, v0")
    e(f"v_and_b32 v{vT[1]}, 3, v0")
    e(f"v_lshlrev_b32 v{vT[1]}, 4, v{vT[1]}")
    e(f"s_movk_i32 s{sP}, 2688")
    e(f"v_mad_u32_u24 v{vDq}, v{vT[0]}, s{sP}, v{vT[1]}")
    e(f"s_movk_i32 s{sP}, 896")
    e(f"v_mad_u32_u24 v{vDo}, v{vT[0]}, s{sP}, v{vT[1]}")
    e(f"s_movk_i32 s{sC}, 3584")
    e(f"v_mad_u32_u24 v{vDg}, v{vT[0]}, s{sC}, v{vT[1]}")
    e(f"s_mul_i32 s{sLv}, s{sV}, 7168")
    e(f"s_mul_i32 s{sW1}, s{sV}, {112*2688}")
    e(f"s_mul_i32 s{sP}, s{sHS}, 56")
    e(f"s_add_u32 s{sW1}, s{sW1}, s{sP}")
    e(f"s_mul_i32 s{sW3}, s{sV}, {112*3584}")
    e(f"s_lshl_b32 s{sP}, s{sJ}, 6")
    e(f"s_add_u32 s{sW3}, s{sW3}, s{sP}")
    e(f"s_mul_i32 s{sBv}, s{sV}, {BLK}")
    e(f"s_add_u32 s{sBv}, s{sBv}, {RB}")
    e(f"s_mul_i32 s{sMv}, s{sV}, {MB}")
    e(f"s_add_u32 s{sMv}, s{sMv}, {MISC}")
    e(f"s_mul_i32 s{sLN2}, s{sTB}, {32*896}")
    e(f"s_add_u32 s{sBF1}, s{sLN2}, {16*896}")
    e(f"s_mul_i32 s{sFc}, s{sX}, {256*896}")
    pU, pA, pB, pS0, pS1, pS2, pS3 = 57, 58, 59, 60, 61, 62, sW2
    pD0, pD1, pD2, pD3 = 48, 49, 50, 51
    e(f"s_lshl_b32 s{pU}, s2, 2"); e(f"s_add_u32 s{pU}, s{pU}, s{sV}")
    e(f"s_cmp_ge_u32 s2, 196")
    e(f"s_cbranch_scc1 L_prep2")
    e(f"s_mul_i32 s{pA}, s{pU}, 9363"); e(f"s_lshr_b32 s{pA}, s{pA}, 16")
    e(f"s_mul_i32 s{pB}, s{pA}, 7"); e(f"s_sub_u32 s{pB}, s{pU}, s{pB}")
    e(f"s_mul_i32 s{pS0}, s{pA}, 14336"); e(f"s_lshl_b32 s{pS1}, s{pB}, 7"); e(f"s_add_u32 s{pS0}, s{pS0}, s{pS1}")
    e(f"s_add_u32 s{pS1}, s{pS0}, 64")
    e(f"s_mul_i32 s{pD0}, s{pB}, {2*112*1024}")
    e(f"s_lshl_b32 s{pA}, s{pA}, 10"); e(f"s_add_u32 s{pD0}, s{pD0}, s{pA}"); e(f"s_add_u32 s{pD0}, s{pD0}, {WDF}")
    e(f"s_add_u32 s{pD1}, s{pD0}, {112*1024}")
    e(f"v_mov_b32 v{vA3}, v{vDo}")
    e(f"s_branch L_prep3")
    g.label("L_prep2")
    e(f"s_sub_u32 s{pS1}, s{pU}, 784")
    e(f"s_mul_i32 s{pA}, s{pS1}, 2341"); e(f"s_lshr_b32 s{pA}, s{pA}, 16")
    e(f"s_mul_i32 s{pB}, s{pA}, 28"); e(f"s_sub_u32 s{pB}, s{pS1}, s{pB}")
    e(f"s_mul_i32 s{pD0}, s{pA}, {2*SL}")
    e(f"s_lshl_b32 s{pD1}, s{pB}, 10"); e(f"s_add_u32 s{pD0}, s{pD0}, s{pD1}"); e(f"s_add_u32 s{pD0}, s{pD0}, {MXF}")
    e(f"s_cmp_ge_u32 s{pS1}, 224"); e(f"s_cselect_b32 s{pD0}, {BIG}, s{pD0}")
    e(f"s_add_u32 s{pD1}, s{pD0}, {SL}")
    e(f"s_mul_i32 s{pS0}, s{pB}, {16*3584}"); e(f"s_lshl_b32 s{pA}, s{pA}, 6"); e(f"s_add_u32 s{pS0}, s{pS0}, s{pA}")
    e(f"s_add_u32 s{pS0}, s{pS0}, 3072"); e(f"s_mov_b32 s{pS1}, s{pS0}")
    e(f"v_mov_b32 v{vA3}, v{vDg}")
    g.label("L_prep3")
    e(f"s_mul_i32 s{pA}, s{pU}, 9363"); e(f"s_lshr_b32 s{pA}, s{pA}, 22")
    e(f"s_mul_i32 s{pB}, s{pA}, 448"); e(f"s_sub_u32 s{pB}, s{pU}, s{pB}"); e(f"s_lshr_b32 s{pB}, s{pB}, 4")
    e(f"s_and_b32 s{sP}, s{pU}, 15")
    e(f"s_mul_i32 s{pD2}, s{sP}, {3*SL}"); e(f"s_add_u32 s{pD2}, s{pD2}, {W1F}")
    e(f"s_mul_i32 s{sP}, s{sP}, 56")
    e(f"s_add_u32 s{pS3}, s{pU}, 128"); e(f"s_lshr_b32 s{pS3}, s{pS3}, 4")
    e(f"s_lshl_b32 s{pD3}, s{pS3}, 10"); e(f"s_add_u32 s{pD3}, s{pD3}, s{pD2}"); e(f"s_add_u32 s{pD3}, s{pD3}, {2*SL}")
    e(f"s_cmp_ge_u32 s{pU}, 320"); e(f"s_cselect_b32 s{pD3}, {BIG}, s{pD3}")
    e(f"s_mul_i32 s{pS3}, s{pS3}, {16*2688}"); e(f"s_add_u32 s{pS3}, s{pS3}, s{sP}")
    e(f"s_mul_i32 s{sC}, s{pA}, {SL}"); e(f"s_add_u32 s{pD2}, s{pD2}, s{sC}"); e(f"s_lshl_b32 s{sC}, s{pB}, 10"); e(f"s_add_u32 s{pD2}, s{pD2}, s{sC}")
    e(f"s_add_u32 s{pA}, s{pA}, 1"); e(f"s_mul_i32 s{sC}, s{pA}, 896")
    e(f"s_cmp_eq_u32 s{pA}, 3"); e(f"s_cselect_b32 s{sC}, 0, s{sC}")
    e(f"s_mul_i32 s{pS2}, s{pB}, {16*2688}"); e(f"s_add_u32 s{pS2}, s{pS2}, s{sP}"); e(f"s_add_u32 s{pS2}, s{pS2}, s{sC}")
    e("s_waitcnt lgkmcnt(0)")
    def mk(d, src, size):
        e(f"s_mov_b32 s{d}, s{src}"); e(f"s_mov_b32 s{d+1}, s{src+1}")
        e(f"s_mov_b32 s{d+2}, {size}"); e(f"s_mov_b32 s{d+3}, 0x20000")
    mk(dX0, 84, 2048*896)
    g.prefetch(dX0, 0, 1792, vT[2], sT[0], sbase=sFc)
    mk(dWQ, 86, 448*1344*2)
    def pfkv():
        e(f"s_mul_i32 s{sT[0]}, s{sWID}, 49")
        e(f"v_min_u32 v{vT[2]}, 48, v0"); e(f"v_add_u32 v{vT[2]}, s{sT[0]}, v{vT[2]}")
        e(f"v_mul_u32_u24 v{vT[3]}, 37450, v{vT[2]}"); e(f"v_lshrrev_b32 v{vT[3]}, 19, v{vT[3]}")
        e(f"v_mul_u32_u24 v{vT[3]}, 7, v{vT[3]}"); e(f"v_add_u32 v{vT[2]}, v{vT[2]}, v{vT[3]}")
        e(f"v_lshlrev_b32 v{vT[2]}, 7, v{vT[2]}")
        g.vm(f"buffer_load_dword {R(JUNK,1)}, v{vT[2]}, {srd(dWQ)}, 0 offen offset:896")
    if opt.pfmode == 1: g.prefetch(dWQ, 0, 9408, vT[2], sT[0])
    if opt.pfmode == 2: pfkv()
    if opt.pfmode == 4:
        e(f"s_cmp_lg_u32 s{sV}, 3"); e(f"s_cbranch_scc1 L_nopf")
        for q in range(4):
            e(f"s_sub_u32 s{sWID}, s{sWID}, {q}"); pfkv(); g.vmq.pop(); e(f"s_add_u32 s{sWID}, s{sWID}, {q}")
        g.label("L_nopf")
    e(f"s_cmp_ge_u32 s2, 196")
    e(f"s_cselect_b32 s{dMX}, s92, s96"); e(f"s_cselect_b32 s{dMX+1}, s93, s97")
    e(f"s_cselect_b32 s{dWD}, s94, s96"); e(f"s_cselect_b32 s{dWD+1}, s95, s97")
    e(f"s_mov_b32 s{dMX+2}, {448*1792*2}"); e(f"s_mov_b32 s{dMX+3}, 0x20000")
    e(f"s_mov_b32 s{dWD+2}, {448*1792*2}"); e(f"s_mov_b32 s{dWD+3}, 0x20000")
    def prep_dma():
        e(f"s_mov_b32 m0, s{sMv}")
        e(f"v_mov_b32 v{vT[3]}, {EPOCH}")
        g.vm(f"buffer_load_dwordx4 v{vA3}, {srd(dMX)}, s{pS0} offen lds")
        e(f"s_add_u32 m0, s{sMv}, 1024")
        g.vm(f"buffer_load_dword v{vPoll}, v{vT[3]}, {srd(dWS)}, 0 offen sc1", "epoch")
        g.vm(f"buffer_load_dwordx4 v{vA3}, {srd(dWD)}, s{pS1} offen lds")
        e(f"s_add_u32 m0, s{sMv}, 2048")
        g.vm(f"buffer_load_dwordx4 v{vDq}, {srd(dWQ)}, s{pS2} offen lds")
        e(f"s_add_u32 m0, s{sMv}, 3072")
        g.vm(f"buffer_load_dwordx4 v{vDq}, {srd(dWQ)}, s{pS3} offen lds", "prep")
    def x0load(i):
        g.vm(f"buffer_load_dwordx4 {vr(X+8*i,4)}, v{vDo}, {srd(dX0)}, s{sLN2} offen offset:{64*i}")
        g.vm(f"buffer_load_dwordx4 {vr(X+8*i+4,4)}, v{vDo}, {srd(dX0)}, s{sBF1} offen offset:{64*i}", f"x0_{i}")
    for i in range(opt.x0n): x0load(i)
    mk(dWS, 82, WS_SIZE)
    if opt.pfmode == 3: pfkv()
    mk(dWG, 92, 448*1792*2)
    mk(dWU, 94, 448*1792*2)
    e(f"s_mul_i32 s{sP}, s{sJ}, 9363"); e(f"s_lshr_b32 s{sP}, s{sP}, 16")
    e(f"s_mul_i32 s{sC}, s{sP}, 7"); e(f"s_sub_u32 s{sC}, s{sJ}, s{sC}")
    e(f"s_cmp_ge_u32 s{sJ}, 28")
    e(f"s_cselect_b32 s{sP}, s{sC}, s{sP}")
    e(f"s_cselect_b32 s{sC}, 0, s{sC}")
    e(f"s_cselect_b32 s{dWSB+2}, 0, {WS_SIZE}")
    e(f"s_cselect_b32 s{dOUT+2}, 0, {2048*896}")
    e(f"s_mov_b32 s{dWSB}, s{dWS}"); e(f"s_mov_b32 s{dWSB+1}, s{dWS+1}"); e(f"s_mov_b32 s{dWSB+3}, 0x20000")
    e(f"s_mov_b32 s{dOUT}, s98"); e(f"s_mov_b32 s{dOUT+1}, s99"); e(f"s_mov_b32 s{dOUT+3}, 0x20000")
    mk(dWO, 88, 448*896)
    def warm_mall():
        e(f"v_lshlrev_b32 v{vT[2]}, 3, v{vL16}"); e(f"v_min_u32 v{vT[3]}, {12*128}, v{vT[2]}")
        e(f"s_mul_i32 s{sT[0]}, s{pU}, {13*128}")
        g.vm(f"buffer_load_dword {R(JUNK,1)}, v{vT[3]}, {srd(dWG)}, s{sT[0]} offen")
        g.vm(f"buffer_load_dword {R(JUNK,1)}, v{vT[3]}, {srd(dWU)}, s{sT[0]} offen")
        e(f"v_min_u32 v{vT[3]}, {3*128}, v{vT[2]}"); e(f"s_lshl_b32 s{sT[0]}, s{pU}, 9")
        g.vm(f"buffer_load_dword {R(JUNK,1)}, v{vT[3]}, {srd(dWO)}, s{sT[0]} offen")
    if opt.warm == 1: warm_mall()
    e(f"s_lshl_b32 s{sT[0]}, s{sX}, 2"); e(f"s_add_u32 s{sP}, s{sP}, s{sT[0]}")
    e(f"s_lshr_b32 s{sT[0]}, s{sV}, 1"); e(f"s_lshl_b32 s{sTBO}, s{sP}, 1"); e(f"s_add_u32 s{sTBO}, s{sTBO}, s{sT[0]}")
    e(f"s_and_b32 s{sT[1]}, s{sV}, 1"); e(f"s_lshl_b32 s{sCTO}, s{sC}, 1"); e(f"s_add_u32 s{sCTO}, s{sCTO}, s{sT[1]}")
    e(f"v_and_b32 v{vT[0]}, 31, v0")
    e(f"v_lshrrev_b32 v{vT[1]}, 5, v0")
    e(f"v_mul_u32_u24 v{vRow}, 896, v{vT[0]}")
    e(f"v_lshl_add_u32 v{vRow}, v{vT[1]}, 4, v{vRow}")
    e(f"s_mul_i32 s{sT[2]}, s{sTBO}, {32*896}"); e(f"s_lshl_b32 s{sT[3]}, s{sCTO}, 6"); e(f"s_add_u32 s{sT[2]}, s{sT[2]}, s{sT[3]}")
    e(f"v_add_u32 v{vRow}, s{sT[2]}, v{vRow}")
    e(f"v_lshlrev_b32 v{vStW}, 4, v{vT[0]}")
    e(f"v_lshl_add_u32 v{vStW}, v{vT[1]}, 2, v{vStW}")
    e(f"v_add_u32 v{vLA}, {SA}, v{vL16}")
    e(f"v_and_b32 v{vP8}, 7, v0"); e(f"v_lshlrev_b32 v{vP8}, 2, v{vP8}")
    e(f"v_min_u32 v{vPx}, 13, v{vT[0]}"); e(f"v_lshlrev_b32 v{vPx}, 2, v{vPx}")
    e(f"v_cmp_eq_u32 vcc, 0, v0")
    e(f"v_bfrev_b32 v{vL0}, 1")
    e(f"v_cndmask_b32 v{vL0}, v{vL0}, 0, vcc")
    e(f"v_bfe_u32 v{vT[2]}, v0, 2, 2")
    e(f"v_lshl_add_u32 v{vT[2]}, v{vT[1]}, 3, v{vT[2]}")
    e(f"v_and_b32 v{vT[3]}, 1, v0"); e(f"v_lshlrev_b32 v{vT[3]}, 4, v{vT[3]}")
    e(f"v_bfe_u32 v{vT[4]}, v0, 1, 1"); e(f"v_lshl_add_u32 v{vT[3]}, v{vT[4]}, 3, v{vT[3]}")
    e(f"v_bfe_u32 v{vT[4]}, v0, 4, 1")
    e(f"v_lshl_add_u32 v{vT[5]}, v{vT[2]}, 6, v{vT[3]}")
    e(f"v_lshl_add_u32 v{vTr}, v{vT[4]}, 5, v{vT[5]}")
    e(f"v_lshl_add_u32 v{vT[5]}, v{vT[4]}, 10, v{vT[5]}")
    e(f"v_add_u32 v{vTrA}, {SA}, v{vTr}")
    e(f"v_lshl_add_u32 v{vTrM1}, v{vT[2]}, 5, v{vT[3]}")
    e(f"s_lshl_b32 s{sT[2]}, s{sV}, 2"); e(f"s_and_b32 s{sT[2]}, s{sT[2]}, 8")
    e(f"v_xor_b32 v{vT[2]}, s{sT[2]}, v0")
    e(f"v_lshrrev_b32 v{vT[2]}, 1, v{vT[2]}"); e(f"v_mul_u32_u24 v{vDm}, 3584, v{vT[2]}")
    e(f"v_and_b32 v{vT[3]}, 1, v0"); e(f"v_lshl_add_u32 v{vDm}, v{vT[3]}, 4, v{vDm}")
    e(f"s_mov_b32 s{sTO}, 0")
    e(f"s_getreg_b32 s{sXCC}, hwreg(HW_REG_XCC_ID)")
    e(f"s_and_b32 s{sXCC}, s{sXCC}, 7")
    e(f"s_lshr_b32 s{sT[2]}, s{sTB}, 1"); e(f"s_lshl_b32 s{sFl}, s{sT[2]}, 7")
    e(f"s_lshl_b32 s{sT[2]}, s{sHS}, 3"); e(f"s_add_u32 s{sFl}, s{sFl}, s{sT[2]}")
    e(f"s_lshl_b32 s{sT[2]}, s{sT[1]}, 2"); e(f"s_add_u32 s{sFl}, s{sFl}, s{sT[2]}"); e(f"s_add_u32 s{sFl}, s{sFl}, {OF}")
    e(f"s_lshl_b32 s{sFc}, s{sP}, 7"); e(f"s_lshl_b32 s{sT[2]}, s{sV}, 5"); e(f"s_add_u32 s{sFc}, s{sFc}, s{sT[2]}")
    e(f"s_add_u32 s{sLM}, s{sLv}, {T2}")
    e(f"s_mul_i32 s{sWM}, s{sT[1]}, {224*3584}"); e(f"s_lshl_b32 s{sT[0]}, s{sJ}, 5"); e(f"s_add_u32 s{sWM}, s{sWM}, s{sT[0]}")
    e(f"s_add_u32 s{sWM}, s{sWM}, 2048")
    e(f"s_and_b32 s{sT[1]}, s{sJ}, 1"); e(f"s_xor_b32 s{sT[1]}, s{sT[1]}, 1"); e(f"s_lshl_b32 s{sT[1]}, s{sT[1]}, 2")
    e(f"s_lshl_b32 s{sTB3}, s{sX}, 3"); e(f"s_add_u32 s{sTB3}, s{sTB3}, s{sT[1]}"); e(f"s_add_u32 s{sTB3}, s{sTB3}, s{sV}")
    for i in range(12): e(f"v_accvgpr_write_b32 a{224+i}, 0")
    e(f"v_mov_b32 v{vT[2]}, 0x3f803f80")
    for i in range(4): e(f"v_accvgpr_write_b32 {R(ONES+i,1)}, v{vT[2]}")
    e(f"v_and_b32 v{vT[3]}, 48, v{vL16}")
    e(f"v_mul_u32_u24 v{vA0}, 34, v{vT[3]}")
    e(f"v_lshrrev_b32 v{vT[3]}, 6, v{vL16}")
    e(f"v_lshl_add_u32 v{vA0}, v{vT[3]}, 4, v{vA0}")
    e(f"v_add_u32 v{vA0}, s{sLv}, v{vA0}")
    e(f"v_mul_u32_u24 v{vA1}, 544, v{vT[1]}")
    e(f"v_lshl_add_u32 v{vA1}, v{vT[0]}, 4, v{vA1}")
    e(f"v_add_u32 v{vA1}, s{sLv}, v{vA1}")
    sums = [B2 + 4, B2 + 5, B2 + 6, B2 + 7]
    for r in sums: e(f"v_mov_b32 v{r}, 0")
    e(f"v_add_u32 v{vT[0]}, s{sMv}, v{vTr}")
    e(f"v_add_u32 v{vT[5]}, s{sMv}, v{vT[5]}")
    e(f"s_cmp_ge_u32 s2, 196")
    e(f"s_cselect_b64 vcc, -1, 0")
    e(f"s_cselect_b32 s{sT[0]}, 32, 1024")
    e(f"v_cndmask_b32 v{vT[5]}, v{vT[0]}, v{vT[5]}, vcc")
    e(f"v_add_u32 v{vT[4]}, s{sT[0]}, v{vT[5]}")
    e(f"s_mov_b32 s{sPS}, s{pD0}"); e(f"s_mov_b32 s{sH1}, s{pD1}"); e(f"s_mov_b32 s{sH2}, s{pD2}"); e(f"s_mov_b32 s{sPS2}, s{pD3}")
    e(f"s_mov_b32 s{sHALF}, 0"); e(f"s_mov_b32 s{sHALF+1}, -1")
    e(f"s_mov_b32 s{sONES}, 0x10000000"); e(f"s_mov_b32 s{sONES+1}, 0x10000000")
    if opt.stamps:
        e("v_mov_b32 v0, 0"); e("v_writelane_b32 v0, s100, 0"); g.nstamp = 1; g.names.append("entry")
    g.stamp("setup done")
    g.dma_tile(dWQ, vDq, sW1, 896, 16*2688, sLv, SA, "dK", mode="bg")
    g.dma_tile(dWQ, vDq, sW1, 1792, 16*2688, sLv, RB, "dV", mode="bg")
    def stats(i):
        g.wait(lg=f"xs{i}")
        for k in range(8):
            r = X + 8*i + k
            e(f"v_dot2c_f32_bf16 v{sums[(k&1)*2]}, v{r}, v{vT[2]}")
            e(f"v_dot2c_f32_bf16 v{sums[(k&1)*2+1]}, v{r}, v{r}")
    for i in range(14):
        o = T1 + (i % 3) * 2176
        g.wait(vm=f"x0_{i}")
        if i == 0 or (opt.fine and i in (3, 6, 9, 11, 13)): g.stamp(f"x0 {i}")
        g.ds(f"ds_write_b128 v{vA0}, {vr(X+8*i,4)} offset:{o}")
        g.ds(f"ds_write_b128 v{vA0}, {vr(X+8*i+4,4)} offset:{o+256}")
        g.ds(f"ds_read_b128 {vr(X+8*i,4)}, v{vA1} offset:{o}")
        g.ds(f"ds_read_b128 {vr(X+8*i+4,4)}, v{vA1} offset:{o+1088}", f"xs{i}")
        if i + opt.x0n < 14: x0load(i + opt.x0n)
        if i >= opt.kvfrom:
            for _ in range(-(-14 // (14 - opt.kvfrom))): g.bg_step()
        if i >= 1: stats(i - 1)
    g.bg_flush()
    if opt.fine: g.stamp("kv issued")
    prep_dma()
    for i in range(1, 8): e(f"s_movk_i32 s{sK[i]}, {4096*i}")
    e(f"s_mul_i32 s{sW2}, s{sV}, {112*896}"); e(f"s_lshl_b32 s{sT[2]}, s{sC}, 7"); e(f"s_add_u32 s{sW2}, s{sW2}, s{sT[2]}")
    e(f"s_cmp_ge_u32 s{sV}, 2")
    e(f"s_cselect_b32 s{dMX}, s{dWU}, s{dWG}"); e(f"s_cselect_b32 s{dMX+1}, s{dWU+1}, s{dWG+1}")
    stats(13)
    e(f"v_add_f32 v{B2}, v{sums[0]}, v{sums[2]}")
    e(f"v_add_f32 v{B2+1}, v{sums[1]}, v{sums[3]}")
    pf_rows(g, dWQ, 7, 21, 0, 3136, vA2, vA3, sT[3])
    if opt.pfw2: g.prefetch(dWO, 0, 3136, vA2, sT[3])
    if opt.tmode == 1 and not opt.noT:
        g.dma_tile(dWG, vDg, sW3, 0, 16*3584, sLv, T0, "dT", mode="bg")
        g.dma_tile(dWU, vDg, sW3, 0, 16*3584, sLv, T1, "dT", mode="bg")
        g.dma_tile(dMX, vDm, sWM, 0, 32*3584, sLM, 0, "dT2", mode="bg")
        g.bg_step(); g.bg_step()
    g.bg_period = opt.bg1
    g.stamp("staged")
    e(f"s_mov_b32 s{sLN2}, {f32(LN2)}"); e(f"s_mov_b32 s{sBF1}, 0x3f803f80")
    e(f"v_bfe_u32 v{vA2}, v{vL16}, 6, 3"); e(f"v_mul_u32_u24 v{vDo}, 896, v{vA2}")
    e(f"v_and_b32 v{vA2}, 48, v{vL16}"); e(f"v_add_u32 v{vDo}, v{vDo}, v{vA2}")
    e(f"s_and_b32 s{sT[1]}, s{sV}, 1")
    e(f"v_xor_b32 v{vA2}, s{sT[1]}, v{vT[1]}"); e(f"v_lshl_add_u32 v{vDo}, v{vA2}, 6, v{vDo}")
    e(f"v_add_u32 v{vA0}, s{sLv}, v{vTrA}")
    if opt.fine:
        g.wait(vm="dK"); g.stamp("dK"); g.wait(vm="dV"); g.stamp("dV")
    cs_block(g, [(vA0, 0, 1024, 256, "dK"), (vA0, SL, 1024, 256, "dV")], [B0, B0 + 16])
    cs_publish(g, [B0, B0 + 16], SMALL + 512, vA2)
    if opt.fine: g.stamp("cs done")
    g.barrier()
    g.stamp("B1")
    cs_final(g, [(CS + 1, 0), (CS + 3, 0)], SMALL + 512, B1 + 16, vA2, True)

def prep_out(g):
    F = g.F
    g.Fwait(vm="prep", earliest=g.mf + opt.prepat)
    P = B1
    for k in range(8):
        va, off = [(vT[5], 0), (vT[4], 0), (vT[0], 2048), (vT[0], 3072)][k >> 1]
        g.Fds(f"ds_read_b64_tr_b16 {vr(P+2*k,2)}, v{va} offset:{off + (k&1)*256}", "pr")
    F(f"v_readfirstlane_b32 s{sE}, v{vPoll}")
    F(f"s_lshl_b32 s{sT[4]}, s{sX}, 7"); F(f"s_add_u32 s{sT[4]}, s{sT[4]}, {XINFO}")
    F(f"s_lshl_b32 s{sT[3]}, s{sJ}, 2"); F(f"s_add_u32 s{sT[3]}, s{sT[4]}, s{sT[3]}")
    g.Ffn(lambda: (g.e(f"s_cmp_lg_u32 s{sV}, 0"), g.e(f"s_cselect_b32 s{sT[3]}, {BIG}, s{sT[3]}")), 2)
    F(f"s_add_u32 s{sTAG}, s{sE}, 1")
    F(f"s_add_u32 s{sXCC}, s{sXCC}, s{sTAG}")
    F(f"v_mov_b32 v{vT[3]}, s{sXCC}")
    g.Fvm(f"buffer_store_dword v{vT[3]}, v{vL0}, {srd(dWS)}, s{sT[3]} offen sc1")
    g.Fwait(lg="pr")
    for k, so in enumerate((sPS, sH1, sH2, sPS2)[:4-4*opt.noprep]):
        g.Fvm(f"buffer_store_dwordx4 {vr(B1+4*k,4)}, v{vL16}, {srd(dWS)}, s{so} offen sc1", "prepst")
    for i in range(7 if opt.tmode == 0 else 0):
        g.Ffn(lambda i=i: (g.e(f"s_add_u32 m0, s{sLv}, {T0 + i*1024}"), g.e(f"s_add_u32 s{sBG}, s{sW1}, {i*16*2688}"),
                           g.vm(f"buffer_load_dwordx4 v{vDq}, {srd(dWQ)}, s{sBG} offen lds", "dQ")), 3)
    g.Fvm(f"buffer_load_dwordx4 {vr(vRES,4)}, v{vRow}, {srd(dX0)}, 0 offen")
    g.Fvm(f"buffer_load_dwordx4 {vr(vRES+4,4)}, v{vRow}, {srd(dX0)}, 0 offen offset:32", "res0")
    F(f"v_lshrrev_b32 v{vA1}, 2, v{vL16}"); F(f"v_and_b32 v{vA1}, 0x7c, v{vA1}")
    def bulk():
        if not opt.notouch: touch(g)
        if not opt.noT:
            n = 24 if opt.pfmx else 16
            pf_rows(g, dWG, n, 28, 0, 448*n, vT[5], vT[4], sBG)
            pf_rows(g, dWU, n, 28, 0, 448*n, vT[5], vT[4], sBG)
    if opt.tmode == 0: g.Ffn(bulk, 3)

def touch(g):
    g.e(f"s_lshl_b32 s{sT[5]}, s{sX}, 18")
    g.prefetch(dWS, OBUF, 2048, vT[5], sBG, sbase=sT[5])
    g.prefetch(dWS, XBUF, 2048, vT[5], sBG, sbase=sT[5])

def stats_fill(g, phase, base, tag, xe, c1, sd, zero=True, earliest=0):
    F = g.F
    if tag:
        g.Fwait(vm=tag, earliest=earliest)
        for k in (12, 13, 0, 1, 4, 5, 8, 9): F(f"v_add_f32 v{base+k}, v{base+k}, v{base+k+2}")
        for k in (12, 13): F(f"v_cndmask_b32 v{base+k}, v{base+k}, 0, {sr(sHALF,2)}")
        for k in (0, 1, 8, 9): F(f"v_add_f32 v{base+k}, v{base+k}, v{base+k+4}")
        for k in (0, 1): F(f"v_add_f32 v{base+k}, v{base+k}, v{base+k+8}")
    a, b = base, base + 1
    if zero:
        for k in range(4):
            if vXE + k != xe: F(f"v_mov_b32 v{vXE+k}, 0")
    F(f"v_permlane32_swap_b32 v{a}, v{b}")
    F(f"v_add_f32 v{a}, v{a}, v{b}")
    F(f"v_mul_f32 v{a}, {f32(1.0/448)}, v{a}")
    F(f"v_mov_b32 v{b}, v{a}")
    F(f"v_permlane32_swap_b32 v{a}, v{b}")
    F(f"v_fma_f32 v{b}, -v{a}, v{a}, v{b}")
    F(f"v_cvt_pk_bf16_f32 v{a}, -v{a}, -v{a}")
    F(f"v_max_f32 v{b}, 0, v{b}")
    F(f"v_cndmask_b32 v{xe}, v{a}, 0, {sr(sHALF,2)}")
    F(f"v_cvt_pk_bf16_f32 v{b}, v{b}, v{b}")
    F(f"v_lshlrev_b32 v{b}, 16, v{b}")
    F(f"v_add_f32 v{b}, {f32(1e-5)}, v{b}")
    F(f"v_cvt_pk_bf16_f32 v{b}, v{b}, v{b}")
    F(f"v_lshlrev_b32 v{b}, 16, v{b}")
    F(f"v_sqrt_f32 v{b}, v{b}")
    F(f"v_cvt_pk_bf16_f32 v{b}, v{b}, v{b}")
    F(f"v_lshlrev_b32 v{sd}, 16, v{b}")
    F(f"v_rcp_f32 v{c1}, v{sd}")
    F(f"v_mul_f32 v{c1}, {f32(LOG2E if phase == 1 else -LOG2E)}, v{c1}")

def xload(g, j, va):
    so, im = g.soff(j * 1024)
    g.vm(f"buffer_load_dwordx4 {vr(X+4*j,4)}, v{va}, {srd(dWS)}, {so} offen offset:{im} sc1", f"x{j}")
def stload(g, i, va, base, tag):
    g.vm(f"buffer_load_dwordx4 {vr(base+4*i,4)}, v{va}, {srd(dWS)}, s{sK[7]} offen offset:{1024*i} sc1", tag)

def load_x(g, inst, stb, two, after_poll=None, stbase=B2):
    e = g.e
    if two:
        e(f"s_andn2_b32 s{sT[0]}, s{stb}, 4"); e(f"s_lshl_b32 s{sT[0]}, s{sT[0]}, 7")
        e(f"v_and_b32 v{vA2}, 0x200, v{vL16}"); e(f"v_add_u32 v{vA2}, v{vA2}, v{vPx}")
    else:
        e(f"s_lshl_b32 s{sT[0]}, s{stb}, 7")
    e(f"s_add_u32 s{sT[0]}, s{sT[0]}, {XF}")
    e(f"s_lshl_b32 s{sT[2]}, s{stb}, 15"); e(f"s_add_u32 s{sT[2]}, s{sT[2]}, {XBUF + inst_off(inst)}")
    e(f"v_add_u32 v{vA0}, s{sT[2]}, v{vL16}")
    if two: e(f"v_xor_b32 v{vA1}, {4*XB}, v{vA0}")
    g.set_need(inst)
    g.poll_loop(vA2 if two else vPx, sT[0])
    g.stamp("x flags seen")
    for j in range(12): xload(g, j, vA0)
    if after_poll: after_poll()
    order = [("x", 12), ("x", 13)] + [("s", i) for i in range(4)] + [("x", j) for j in range(14, 28)]
    posts = {}
    for j, (k, n) in enumerate(order):
        jj = j if j < 2 else (2 + (j - 2) // 2 if j < 10 else j - 4)
        posts.setdefault(jj, []).append((lambda n=n: xload(g, n, vA0)) if k == "x" else (lambda n=n: stload(g, n, vA0, stbase, "st")))
    return posts

_uid = [0]
def gemm_chain(g, segs):
    _uid[0] += 1; u = _uid[0]
    items = []
    nr = 0
    reads = []
    for sg in segs:
        tiles = sg["tiles"]; nt = len(tiles); posts = sg.get("posts") or {}
        for j in range(28):
            for t in range(nt):
                b = AF + 4 * (nr % 6)
                def rd(j=j, t=t, b=b, n=nr, tiles=tiles, gate=(sg.get("gate") if (j == 0 and t == 0) else None)):
                    if gate: gate()
                    va, vb, off, ks, sec = tiles[t]
                    if vb is None:
                        g.ds(f"ds_read_b128 {vr(b,4)}, v{va} offset:{off + j*ks}", f"a{u}_{n}")
                    else:
                        g.ds(f"ds_read_b64_tr_b16 {vr(b,2)}, v{va} offset:{off + j*ks}")
                        g.ds(f"ds_read_b64_tr_b16 {vr(b+2,2)}, v{vb} offset:{off + j*ks + sec}", f"a{u}_{n}")
                reads.append(rd)
                xr = X + 4*j
                c = 0 if j == 0 else None
                m = MF(sg["accs"][t], xr, b, c) if sg["xa"] else MF(sg["accs"][t], b, xr, c)
                pre = [sg["hook"]] if (j == 0 and t == 0 and sg.get("hook")) else []
                post = list(posts.get(j, [])) if t == nt - 1 else []
                items.append([nr, m, pre, post, (f"{sg['xtag']}{j}" if sg.get("xtag") and t == 0 else None)])
                nr += 1
            if j == 25:
                for t in range(nt):
                    m = MF(sg["accs"][t], vXE, sg["css"][t]) if sg["xa"] else MF(sg["accs"][t], sg["css"][t], vXE)
                    items.append([None, m, [g.flush_until_mark] if t == 0 else [], list(posts.get("xe", [])) if t == nt - 1 else [], None])
    D = 4
    steps = []
    for n, m, pre, post, xt in items:
        if n is not None:
            if n % 2 == 0:
                pre = pre + [lambda n=n, xt=xt: g.wait(vm=xt, lg=f"a{u}_{min(n + 1, nr - 1)}")]
            elif xt is not None:
                pre = pre + [lambda xt=xt: g.wait(vm=xt)]
            if n + D < nr: post = [reads[n + D]] + post
        steps.append((pre, m, post))
    return reads[:D], steps

def phi_block(g, acc, scale_regs, scale_lane, tmp):
    e = g.e
    for k in range(0, 16, 2):
        if scale_regs is not None:
            e(f"v_pk_mul_f32 {vr(acc+k,2)}, {vr(acc+k,2)}, {vr(scale_regs+k,2)}")
        else:
            e(f"v_pk_mul_f32 {vr(acc+k,2)}, {vr(acc+k,2)}, {vr(scale_lane,2)} op_sel_hi:[1,0]")
    for k in range(16):
        e(f"v_exp_f32_e64 v{tmp+k}, v{acc+k} clamp")
        e(f"v_max_f32 v{acc+k}, {f32(1e-6*LOG2E)}, v{acc+k}")
    for k in range(16):
        e(f"v_fmac_f32 v{tmp+k}, s{sLN2}, v{acc+k}")
    for k in range(8):
        e(f"v_cvt_pk_bf16_f32 v{acc+k}, v{tmp+2*k}, v{tmp+2*k+1}")

def w1tile(ps, off): return (vTrA, vTrA, off, 1024, 256) if ps == 0 else (vLA, None, off, 1024, 0)

def phase1a(g, ps):
    e = g.e
    accK, accV, accKV = B0, B0 + 16, B1 + 16
    posts = None
    if ps > 0:
        posts = load_x(g, 2, sTB, False, after_poll=lambda: g.barrier())
    pre, steps = gemm_chain(g, [dict(tiles=[w1tile(ps, 0), w1tile(ps, SL)], accs=[accK, accV], xa=True, css=[CS + 0, CS + 2], xtag=('x' if ps > 0 else None), posts=posts)])
    for f in pre: f()
    stats_fill(g, 1, B2, "st" if ps > 0 else None, vXE + 1, vC1, vSD, earliest=g.mf + 30)
    g.F(f"v_lshrrev_b32 v{vA2}, 2, v{vL16}")
    g.F(f"v_and_b32 v{vA2}, 0x7c, v{vA2}")
    g.F(f"v_add_u32 v{vA2}, s{sMv}, v{vA2}")
    g.F(f"v_lshrrev_b32 v{vA3}, 5, v{vL16}")
    g.F(f"v_and_b32 v{vA3}, 16, v{vA3}")
    g.F(f"v_add_u32 v{vA3}, s{sMv}, v{vA3}")
    g.Fds(f"ds_write_b32 v{vA2}, v{vC1} offset:{SMALL}")
    for q in range(4):
        g.Fds(f"ds_read_b128 {vr(B2+4*q,4)}, v{vA3} offset:{SMALL+32*q}", "rs")
    g.mark()
    if ps == 0: prep_out(g)
    g.F(f"v_add_u32 v{vA2}, s{sMv}, v{vL16}")
    g.F(f"v_lshrrev_b32 v{vA3}, 3, v{vL16}"); g.F(f"v_and_b32 v{vA3}, 0x70, v{vA3}")
    g.F(f"v_bfe_u32 v{vT[2]}, v{vL16}, 5, 1"); g.F(f"v_lshl_add_u32 v{vA3}, v{vT[2]}, 9, v{vA3}")
    g.F(f"v_bfe_u32 v{vT[2]}, v{vL16}, 6, 1"); g.F(f"v_lshl_add_u32 v{vA3}, v{vT[2]}, 11, v{vA3}")
    g.F(f"v_bfe_u32 v{vT[2]}, v{vL16}, 4, 1"); g.F(f"v_lshl_add_u32 v{vA3}, v{vT[2]}, 10, v{vA3}")
    g.F(f"s_lshl_b32 s{sT[0]}, s{sV}, 7"); g.F(f"s_add_u32 s{sT[0]}, s{sT[0]}, {MISC}")
    g.F(f"v_add_u32 v{vA3}, s{sT[0]}, v{vA3}")
    g.F(f"v_mov_b32 v{vT[2]}, s{sBF1}")
    g.F(f"s_lshl_b32 s{sT[0]}, s{sHS}, 2"); g.F(f"s_add_u32 s{sT[0]}, s{sT[0]}, s{sV}")
    g.F(f"s_lshl_b32 s{sT[0]}, s{sT[0]}, 13"); g.F(f"s_add_u32 s{sT[0]}, s{sT[0]}, {PART[ps]}")
    g.F(f"s_lshl_b32 s{sT[1]}, s{sG}, 9"); g.F(f"s_add_u32 s{sT[1]}, s{sT[1]}, s{sT[0]}")
    g.F(f"v_mov_b32 v{vT[3]}, s{sTAG}")
    g.F(f"v_lshrrev_b32 v{vT[4]}, 1, v{vL16}")
    g.F(f"s_mov_b32 s{sT[2]}, 0x80808080"); g.F(f"s_mov_b32 s{sT[3]}, 0x80808080")
    g.bg_period = opt.bg1
    g.stream(steps)
    g.flush()
    g.wait(lg="all")
    g.stamp("kv gemm done")
    e(f"v_add_u32 v{vA0}, s{sT[0]}, v{vL16}")
    g.bg_step()
    phi_block(g, accK, B2, None, B1)
    g.bg_step()
    for k in range(0, 16, 2):
        e(f"v_pk_mul_f32 {vr(accV+k,2)}, {vr(accV+k,2)}, {vr(B2+k,2)}")
    for k in range(8):
        e(f"v_cvt_pk_bf16_f32 v{accV+k}, v{accV+2*k}, v{accV+2*k+1}")
    for k in range(8):
        e(f"v_cndmask_b32 v{accV+k}, v{accV+k}, v{vT[2]}, {sr(sONES,2)}")
    e(MF(accKV, accK, accV, 0))
    e(MF(accKV, accK + 4, accV + 4))
    for q in range(4):
        g.ds(f"ds_write_b128 v{vA2}, {vr(accKV+4*q,4)} offset:{1024*q}")
    g.barrier(vm="prepst" if ps == 0 else None)
    for w in range(4):
        g.ds(f"ds_read_b128 {vr(B0+16+4*w,4)}, v{vA3} offset:{w*MB}", f"kp{w}")
    r = B0 + 16
    g.wait(lg="kp1")
    e(f"v_pk_add_f32 {vr(r,2)}, {vr(r,2)}, {vr(r+4,2)}"); e(f"v_pk_add_f32 {vr(r+2,2)}, {vr(r+2,2)}, {vr(r+6,2)}")
    g.wait(lg="kp3")
    e(f"v_pk_add_f32 {vr(r+8,2)}, {vr(r+8,2)}, {vr(r+12,2)}"); e(f"v_pk_add_f32 {vr(r+10,2)}, {vr(r+10,2)}, {vr(r+14,2)}")
    e(f"v_pk_add_f32 {vr(r,2)}, {vr(r,2)}, {vr(r+8,2)}"); e(f"v_pk_add_f32 {vr(r+2,2)}, {vr(r+2,2)}, {vr(r+10,2)}")
    e(f"v_cvt_pk_bf16_f32 v{r}, v{r}, v{r+1}")
    e(f"v_cvt_pk_bf16_f32 v{r+1}, v{r+2}, v{r+3}")
    e(f"v_cndmask_b32 v{r+1}, v{r+1}, v{vT[3]}, {sr(sT[2],2)}")
    g.vm(f"buffer_store_dwordx2 {vr(r,2)}, v{vT[4]}, {srd(dWS)}, s{sT[1]} offen sc1")
    g.stamp("partial stored")

def w2reg(n): return B0 + 4*n if n < 8 else X + 64 + 4*(n - 8)

def w2_reads(g, rnd, fill, base):
    D = g.Fds if fill else g.ds
    for n in range(8):
        ks, a = n >> 1, n & 1
        hl, f = ks >> 1, ks & 1
        b = w2reg(8*rnd + n)
        g0 = 7*hl + 4*f
        def off(gm): return base + (gm >> 1) * 1024 + (gm & 1) * 256 + a * 512
        D(f"ds_read_b64_tr_b16 {vr(b,2)}, v{vA2} offset:{off(g0)}")
        if f == 0: D(f"ds_read_b64_tr_b16 {vr(b+2,2)}, v{vA2} offset:{off(g0+1)}", "w2")
        else: D(f"ds_read_b64_tr_b16 {vr(b+2,2)}, v{vA3} offset:{off(g0+1)}", "w2")

def gather_text(g, i):
    so, im = g.soff(i * 1024)
    return f"buffer_load_dwordx4 {vr(GR+4*i,4)}, v{vA0}, {srd(dWS)}, {so} offen offset:{im} sc1"

def phase1b(g, ps):
    e = g.e
    accQ = B1
    if ps == 0:
        if opt.tmode == 1:
            g.dma_tile(dWQ, vDq, sW1, 0, 16*2688, sLv, SA, "dQ")
            g.bg_flush()
            if opt.touchat == 0 and not opt.notouch: touch(g)
        e(f"s_mul_i32 s{sW1}, s{sHS}, {3*SL}"); e(f"s_add_u32 s{sW1}, s{sW1}, s{sLv}")
        e(f"v_add_u32 v{vA2}, s{sLv}, v{vTr if opt.tmode == 0 else vTrA}")
        cs_block(g, [(vA2, T0, 1024, 256, "dQ")], [B0])
        cs_publish(g, [B0], SMALL + 512, vT[3])
    else:
        g.dma_tile(dWS, vL16, sW1, W1F + 2*SL, 1024, sLv, SA, "dQ", flags="sc1")
        g.dma_tile(dWO, vDo, sW2, 0, 8*896, sLv, RB, "dO0")
    e(f"v_and_b32 v{vA3}, 0x1ff, v{vTr}")
    e(f"s_add_u32 s{sT[0]}, s{sLv}, {SA}")
    e(f"v_add_u32 v{vA3}, s{sT[0]}, v{vA3}")
    e(f"v_and_b32 v{vA2}, 0x200, v{vTr}")
    e(f"v_lshl_add_u32 v{vA2}, v{vA2}, 1, v{vA3}")
    g.barrier(vm="dQ")
    g.stamp("B2q")
    gat = opt.gat0 if ps == 0 else opt.gat
    posts = {gat + i: [lambda i=i: g.vm(gather_text(g, i), f"pt{i}")] for i in range(8)}
    if ps == 0: posts[gat - 1] = [lambda: g.poll_issue(vA1, sT[4], "xi")]
    qt = (vTr, vTr, T0, 1024, 256) if (ps == 0 and opt.tmode == 0) else w1tile(ps, 0)
    pre, steps = gemm_chain(g, [dict(tiles=[qt], accs=[accQ], xa=False, css=[CS + 4], posts=posts)])
    for f in pre: f()
    if ps == 0: cs_final(g, [(CS + 5, 0)], SMALL + 512, B0, vT[3], True)
    g.mark()
    if ps > 0:
        g.Fwait(vm="dO0", earliest=g.mf + 8)
        w2_reads(g, 0, True, SL)
        g.Fwait(lg="w2")
    g.stream(steps)
    g.flush()
    g.stamp("q gemm done")
    phi_block(g, accQ, None, vC1, X + 16)
    e(f"v_cndmask_b32 v{accQ+6}, v{accQ+6}, 0, {sr(sHALF,2)}")
    e(f"v_cndmask_b32 v{accQ+7}, v{accQ+7}, 0, {sr(sHALF,2)}")
    if ps == 0 and opt.tmode == 0: g.dma_tile(dWO, vDo, sW2, 0, 8*896, sLv, SA, "dO0")
    g.dma_tile(dWO, vDo, sW2, 56*896, 8*896, sLv, RB, "dO1")
    if ps == 0 and opt.tmode == 1 and opt.touchat == 1 and not opt.notouch: touch(g)

def placement_check(g):
    e = g.e
    L = g.newlabel("Lxi"); D = g.newlabel("Lxid")
    g.set_need(1)
    g.wait(vm="xi")
    e(f"v_subrev_u32 v{vT[2]}, s{sNEED}, v{vPoll}")
    e(f"v_cmp_le_u32 vcc, 8, v{vT[2]}")
    e(f"s_cbranch_vccz {D}")
    g.label(L)
    e(f"buffer_load_dword v{vPoll}, v{vA1}, {srd(dWS)}, s{sT[4]} offen sc1")
    e(f"s_add_u32 s{sTO}, s{sTO}, 1"); e(f"s_cmp_gt_u32 s{sTO}, 0x20000"); e(f"s_cbranch_scc1 {D}")
    e("s_waitcnt vmcnt(0)")
    e(f"v_subrev_u32 v{vT[2]}, s{sNEED}, v{vPoll}")
    e(f"v_cmp_le_u32 vcc, 8, v{vT[2]}")
    e(f"s_cbranch_vccnz {L}")
    g.label(D)
    e(f"v_cmp_ne_u32 vcc, s{sXCC}, v{vPoll}")
    if opt.force_slow: e("s_branch L_slow")
    else: e("s_cbranch_vccnz L_slow")

def phase1c(g, ps):
    e = g.e
    accQ, accO = B1, B1 + 16
    Lc = g.newlabel("Lchk"); Lr = g.newlabel("Lre"); D = g.newlabel("Lgd")
    e(f"v_and_b32 v{vT[0]}, 0x1f0, v{vL16}"); e(f"v_lshrrev_b32 v{vT[1]}, 6, v{vL16}"); e(f"v_and_b32 v{vT[1]}, 8, v{vT[1]}")
    e(f"v_add3_u32 v{vT[0]}, v{vT[0]}, v{vT[1]}, s{sMv}")
    e(f"v_lshlrev_b32 v{vT[1]}, 1, v{vT[1]}")
    e(f"v_bfe_u32 v{vT[2]}, v{vL16}, 4, 3"); e(f"v_lshl_add_u32 v{vT[1]}, v{vT[2]}, 6, v{vT[1]}")
    e(f"v_bfe_u32 v{vT[2]}, v{vL16}, 7, 2"); e(f"v_mul_u32_u24 v{vT[2]}, {MB}, v{vT[2]}")
    e(f"v_add_u32 v{vT[2]}, {MISC+SMALL}, v{vT[2]}"); e(f"v_add_u32 v{vT[1]}, v{vT[1]}, v{vT[2]}")
    e(f"s_lshl_b32 s{sT[0]}, s{sTB}, 15"); e(f"s_lshl_b32 s{sT[1]}, s{sHS}, 11"); e(f"s_add_u32 s{sT[0]}, s{sT[0]}, s{sT[1]}")
    e(f"s_add_u32 s{sT[0]}, s{sT[0]}, {OBUF + inst_off(ps)}")
    e(f"s_mov_b32 s{sT[1]}, {f32(LOG2E)}")
    e(f"v_mov_b32 v{vT[4]}, {f32(1e-6*LOG2E)}")
    e(f"v_mov_b32 v{vT[3]}, s{sTAG}")
    e(f"s_mov_b32 s{sT[2]}, 0x88888888"); e(f"s_mov_b32 s{sT[3]}, 0x88888888")
    e(f"s_movk_i32 s{sT[4]}, 0x3f80"); e(f"s_mov_b32 s{sT[5]}, 0x3f800000")
    g.label(Lc)
    for i in range(8):
        r = GR + 4*i
        g.wait(vm=f"pt{i}")
        if i == 0:
            e(f"v_xor_b32 v{vT[2]}, v{r+3}, v{vT[3]}")
            for k in range(4):
                e(f"v_lshlrev_b32 v{X+2*k}, 16, v{r+k}"); e(f"v_and_b32 v{X+2*k+1}, 0xffff0000, v{r+k}")
        else:
            e(f"v_bitop3_b32 v{vT[2]}, v{vT[2]}, v{r+3}, v{vT[3]} bitop3:0xf6")
            for k in range(4):
                e(f"v_dot2c_f32_bf16 v{X+2*k}, s{sT[4]}, v{r+k}"); e(f"v_dot2c_f32_bf16 v{X+2*k+1}, s{sT[5]}, v{r+k}")
    e(f"v_cmp_ne_u32 vcc, 0, v{vT[2]}")
    e(f"s_and_b64 vcc, vcc, {sr(sT[2],2)}")
    e(f"s_cbranch_scc1 {Lr}")
    g.label(D)
    g.tail += [f"{Lr}:", f"s_add_u32 s{sTO}, s{sTO}, 1", f"s_cmp_gt_u32 s{sTO}, 0x20000", f"s_cbranch_scc1 {D}"] \
            + [gather_text(g, i) for i in range(8)] + ["s_waitcnt vmcnt(0)", f"s_branch {Lc}"]
    g.stamp("gathered")
    if ps == 0 and not opt.noT and opt.mxat == 0 and opt.tmode == 0: g.dma_tile(dMX, vDm, sWM, 0, 32*3584, sLM, 0, "dT2")
    e(f"s_mov_b32 s{sT[2]}, 0")
    for k in range(4): e(f"v_permlane32_swap_b32 v{X+k}, v{X+4+k}")
    e(f"v_pk_add_f32 {vr(X,2)}, {vr(X,2)}, {vr(X+4,2)}"); e(f"v_pk_add_f32 {vr(X+2,2)}, {vr(X+2,2)}, {vr(X+6,2)}")
    e(f"v_cvt_pk_bf16_f32 v{X}, v{X}, v{X+1}")
    e(f"v_cvt_pk_bf16_f32 v{X+1}, v{X+2}, v{X+3}")
    e(f"v_cndmask_b32 v{X+1}, v{X+1}, 0, {sr(sT[2],2)}")
    g.ds(f"ds_write_b64 v{vT[0]}, {vr(X,2)} offset:{SMALL}")
    g.barrier()
    if ps == 0 and opt.tmode == 1: g.dma_tile(dWO, vDo, sW2, 0, 8*896, sLv, SA, "dO0")
    g.ds(f"ds_read_b128 {vr(AF,4)}, v{vT[1]}", "kx0")
    g.ds(f"ds_read_b128 {vr(AF+4,4)}, v{vT[1]} offset:32", "kx1")
    g.wait(lg="kx0")
    e(MF(accO, AF, accQ, 0))
    g.wait(lg="kx1")
    e(MF(accO, AF + 4, accQ + 4))
    e(f"v_mov_b32 v{vT[2]}, v{accO+12}")
    e(f"v_mov_b32 v{vT[3]}, v{accO+12}")
    e(f"v_permlane32_swap_b32 v{vT[3]}, v{vT[2]}")
    e(f"v_fma_f32 v{vT[2]}, v{vT[2]}, s{sT[1]}, v{vT[4]}")
    e(f"v_rcp_f32 v{vT[2]}, v{vT[2]}")
    e(f"v_cndmask_b32 v{vT[4]}, v{vT[2]}, 0, {sr(sHALF,2)}")
    for k in range(0, 16, 2):
        m = vT[2] if k < 12 else vT[4]
        e(f"v_pk_mul_f32 {vr(accO+k,2)}, {vr(accO+k,2)}, {vr(m,2)} op_sel_hi:[1,0]")
    for k in range(8):
        e(f"v_cvt_pk_bf16_f32 v{accO+k}, v{accO+2*k}, v{accO+2*k+1}")
        if k == 3: g.vm(f"buffer_store_dwordx4 {vr(accO,4)}, v{vL16}, {srd(dWS)}, s{sT[0]} offen {g.sc}")
    g.vm(f"buffer_store_dwordx4 {vr(accO+4,4)}, v{vL16}, {srd(dWS)}, s{sT[0]} offen offset:1024 {g.sc}", "ost")
    unpack_res(g)
    g.wait(vm="dO1")
    w2_reads(g, 1, False, SL)
    g.wait(vm="ost")
    g.flag_store(dWS, sFl, 0, ps + 1, vT[2], sT[1])
    if ps == 0:
        w2_reads(g, 0, False, 0)
        e(f"v_add_u32 v{vA2}, s{sLv}, v{vTr}")
        e(f"v_bfe_u32 v{vT[4]}, v{vL16}, 8, 1")
        e(f"v_mul_u32_u24 v{vA3}, 3584, v{vT[4]}")
        e(f"v_add3_u32 v{vA3}, v{vA3}, s{sLM}, v{vTrM1}")
        g.wait(lg="all")
        cs_block(g, [(vA2, T0, 1024, 256, "dT"), (vA2, T1, 1024, 256, "dT"), (vA3, 0, 512, 128, "dT2")], [B1 + 16, B2, X + 96])
        e(f"v_mul_u32_u24 v{vTrM2}, {14336-128}, v{vT[4]}")
        e(f"v_add3_u32 v{vTrM2}, v{vTrM2}, v{vTrM1}, 64")
        e(f"v_add_u32 v{vTrM2}, {T2 + 64}, v{vTrM2}")
        e(f"v_mul_u32_u24 v{vT[4]}, {14336+128}, v{vT[4]}")
        e(f"v_add_u32 v{vTrM1}, v{vT[4]}, v{vTrM1}")
        e(f"v_add_u32 v{vTrM1}, {T2}, v{vTrM1}")
        cs_publish(g, [B1 + 16, B2, X + 96], 0, vT[3], sa=True)
    g.barrier()
    g.stamp("o published")

def unpack_res(g, fill=False):
    f = g.F if fill else g.e
    g.wait(vm="res0")
    for k in range(8):
        f(f"v_lshlrev_b32 v{ACC4[0]+2*k}, 16, v{vRES+k}")
        f(f"v_and_b32 v{ACC4[0]+2*k+1}, 0xffff0000, v{vRES+k}")

def reduce_addr(g, inst, fill):
    f = g.F if fill else g.e
    f(f"v_add_u32 v{vT[0]}, s{sBv}, v{vL16}")
    for i in (1, 2, 3):
        f(f"s_xor_b32 s{sT[4]}, s{sV}, {i}")
        f(f"s_mul_i32 s{sT[4]}, s{sT[4]}, {BLK}")
        f(f"s_add_u32 s{sT[4]}, s{sT[4]}, {RB + (i-1)*4096}")
        f(f"v_add_u32 v{vT[i]}, s{sT[4]}, v{vL16}")
    f(f"s_lshl_b32 s{sT[2]}, s{sTBO}, 15"); f(f"s_add_u32 s{sT[2]}, s{sT[2]}, {XBUF + inst_off(inst)}")
    f(f"s_lshl_b32 s{sT[1]}, s{sCTO}, 11"); f(f"s_add_u32 s{sT[0]}, s{sT[2]}, s{sT[1]}")
    f(f"s_lshl_b32 s{sT[1]}, s{sC}, 9"); f(f"s_add_u32 s{sT[1]}, s{sT[1]}, s{sT[2]}")
    f(f"s_and_b32 s{sT[2]}, s{sV}, 1"); f(f"s_lshl_b32 s{sT[2]}, s{sT[2]}, 3"); f(f"s_add_u32 s{sT[1]}, s{sT[1]}, s{sT[2]}")
    f(f"s_add_u32 s{sT[1]}, s{sT[1]}, {SL}")
    f(f"s_lshl_b32 s{sT[2]}, s{sTBO}, 7"); f(f"s_lshl_b32 s{sT[4]}, s{sCTO}, 2"); f(f"s_add_u32 s{sT[2]}, s{sT[2]}, s{sT[4]}")
    f(f"s_add_u32 s{sT[2]}, s{sT[2]}, {XF}")

def reduce_store(g, inst, barrier_vm=None, after_reads=None):
    e = g.e
    for i in (1, 2, 3):
        for q in range(4):
            g.ds(f"ds_write_b128 v{vT[0]}, {vr(ACC4[i]+4*q,4)} offset:{(i-1)*4096+q*1024}")
    g.barrier(vm=barrier_vm)
    for q in range(4):
        for i in (1, 2, 3):
            g.ds(f"ds_read_b128 {vr(ACC4[i]+4*q,4)}, v{vT[i]} offset:{q*1024}", f"rd{q}")
    a = ACC4[0]
    e(f"v_mov_b32 v{vT[4]}, 0"); e(f"v_mov_b32 v{vT[5]}, 0")
    for q in range(4):
        g.wait(lg=f"rd{q}")
        for h in (0, 2):
            o = 4*q + h
            e(f"v_pk_add_f32 {vr(a+o,2)}, {vr(a+o,2)}, {vr(ACC4[1]+o,2)}")
            e(f"v_pk_add_f32 {vr(ACC4[2]+o,2)}, {vr(ACC4[2]+o,2)}, {vr(ACC4[3]+o,2)}")
        for h in (0, 2):
            o = 4*q + h
            e(f"v_pk_add_f32 {vr(a+o,2)}, {vr(a+o,2)}, {vr(ACC4[2]+o,2)}")
        for h in (0, 2):
            o = 4*q + h
            e(f"v_cvt_pk_bf16_f32 v{vRES+o//2}, v{a+o}, v{a+o+1}")
        if q & 1:
            f = q >> 1
            if inst == 4:
                g.vm(f"buffer_store_dwordx4 {vr(vRES+4*f,4)}, v{vRow}, {srd(dOUT)}, 0 offen offset:{32*f}")
            else:
                g.vm(f"buffer_store_dwordx4 {vr(vRES+4*f,4)}, v{vL16}, {srd(dWSB)}, s{sT[0]} offen offset:{1024*f} {g.sc}")
        if inst != 4:
            for k in (2*q, 2*q + 1):
                e(f"v_dot2c_f32_bf16 v{vT[4]}, s{sBF1}, v{vRES+k}")
                e(f"v_dot2c_f32_bf16 v{vT[5]}, v{vRES+k}, v{vRES+k}")
    if inst == 4: return
    e(f"v_permlane32_swap_b32 v{vT[4]}, v{vT[5]}")
    e(f"v_add_f32 v{vT[4]}, v{vT[4]}, v{vT[5]}")
    g.vm(f"buffer_store_dword v{vT[4]}, v{vStW}, {srd(dWSB)}, s{sT[1]} offen {g.sc}", "xst")
    if after_reads: after_reads()
    g.wait(vm="xst")
    g.flag_store(dWSB, sT[2], 0, inst, vT[5], sT[3])

def phase2(g, ps):
    e = g.e
    for b in range(2):
        e(f"s_xor_b32 s{sT[0]}, s{sTBO}, {b}"); e(f"s_lshl_b32 s{sT[0]}, s{sT[0]}, 15")
        e(f"s_lshl_b32 s{sT[1]}, s{sV}, 13"); e(f"s_add_u32 s{sT[0]}, s{sT[0]}, s{sT[1]}")
        e(f"s_add_u32 s{sT[0]}, s{sT[0]}, {OBUF + inst_off(ps)}")
        e(f"v_add_u32 v{vA0+b}, s{sT[0]}, v{vL16}")
    reduce_addr(g, 2*ps + 1, False)
    e(f"s_add_u32 s{sT[3]}, s{sFc}, {OF}")
    g.set_need(ps + 1)
    g.poll_loop(vP8, sT[3])
    g.stamp("o flags seen")
    for ks in range(8):
        for b in range(2):
            so, im = g.soff(ks * 1024)
            g.vm(f"buffer_load_dwordx4 {vr(X+4*(2*ks+b),4)}, v{vA0+b}, {srd(dWSB)}, {so} offen offset:{im} sc1", f"o{2*ks+b}")
    steps = []
    for ks in range(8):
        for b in range(2):
            for a in range(2):
                i = 2*b + a
                pre = [lambda n=2*ks+b: g.wait(vm=f"o{n}")] if a == 0 else []
                c = 0 if (ks == 0 and i != 0) else None
                steps.append((pre, MF(ACC4[i], w2reg(2*ks + a), X + 4*(2*ks+b), c), []))
    if ps == 0 and not opt.noT and opt.tmode == 0:
        g.dma_tile(dWG, vDg, sW3, 0, 16*3584, sLv, T0, "dT", mode="bg")
        g.dma_tile(dWU, vDg, sW3, 0, 16*3584, sLv, T1, "dT", mode="bg")
    g.bg_period = 2; g.bg_next = g.mf + 4
    if ps == 0: cs_final(g, [(CS + 0, 0), (CS + 2, 0), (CS + 4, 1)], 0, X + 96, vA2, True, sa=True)
    g.stream(steps)
    g.flush(); g.bg_flush()
    g.stamp("p2 gemm done")
    reduce_store(g, 2*ps + 1)
    if ps == 0 and not opt.noT and opt.mxat == 1 and opt.tmode == 0: g.dma_tile(dMX, vDm, sWM, 0, 32*3584, sLM, 0, "dT2")
    g.stamp("x published")

def h_epilogue(g, accG, accU, n, stores, earliest, c1, sd, start=0):
    first = True
    for k0 in range(start, n, 4):
        ks = range(k0, k0 + 4)
        for k in ks:
            g.F(f"v_mul_f32 v{accG+k}, v{c1}, v{accG+k}", earliest if first else 0); first = False
        for k in ks: g.F(f"v_exp_f32 v{accG+k}, v{accG+k}")
        for k in ks: g.F(f"v_fma_f32 v{accG+k}, v{accG+k}, v{sd}, v{sd}")
        for k in ks: g.F(f"v_rcp_f32 v{accG+k}, v{accG+k}")
        for k in ks: g.F(f"v_mul_f32 v{accU+k}, v{accU+k}, v{accG+k}")
        for k in (k0, k0 + 2): g.F(f"v_cvt_pk_bf16_f32 v{accG+k//2}, v{accU+k}, v{accU+k+1}")
        if k0 % 8 == 4:
            t, tag = stores[k0 // 8]
            g.Fvm(t, tag)

def phase34(g, ps):
    e = g.e
    vXE2, vC2, vSD2 = vT[0], vT[1], vT[2]
    hsc = "sc1" if ps == 0 else g.sc
    e(f"s_lshr_b32 s{sT[0]}, s{sJ}, 3"); e(f"s_mul_i32 s{sT[0]}, s{sT[0]}, {SL}")
    e(f"s_bfe_u32 s{sT[1]}, s{sJ}, 0x20001")
    e(f"s_lshl_b32 s{sT[2]}, s{sT[1]}, 11"); e(f"s_add_u32 s{sT[0]}, s{sT[0]}, s{sT[2]}")
    e(f"s_add_u32 s{sT[0]}, s{sT[0]}, {HBUF + inst_off(ps)}")
    e(f"s_mul_i32 s{sH1}, s{sTB3}, {4*SL}"); e(f"s_add_u32 s{sH1}, s{sH1}, s{sT[0]}")
    e(f"s_xor_b32 s{sT[3]}, s{sTB3}, 4"); e(f"s_mul_i32 s{sH2}, s{sT[3]}, {4*SL}"); e(f"s_add_u32 s{sH2}, s{sH2}, s{sT[0]}")
    e(f"s_add_u32 s{sH2}, s{sH2}, {12*1024}")
    e(f"s_lshl_b32 s{sT[2]}, s{sT[1]}, 10"); e(f"s_sub_u32 s{sPS}, s{sH1}, s{sT[2]}"); e(f"s_add_u32 s{sPS}, s{sPS}, 8192")
    e(f"s_lshr_b32 s{sT[0]}, s{sJ}, 3"); e(f"s_lshl_b32 s{sT[0]}, s{sT[0]}, 6"); e(f"s_lshl_b32 s{sT[2]}, s{sT[1]}, 3"); e(f"s_add_u32 s{sT[0]}, s{sT[0]}, s{sT[2]}")
    e(f"s_and_b32 s{sT[2]}, s{sV}, 1"); e(f"s_lshl_b32 s{sT[2]}, s{sT[2]}, 2"); e(f"s_add_u32 s{sT[0]}, s{sT[0]}, s{sT[2]}")
    e(f"s_add_u32 s{sT[0]}, s{sT[0]}, {HF}")
    e(f"s_lshr_b32 s{sT[2]}, s{sTB3}, 1"); e(f"s_lshl_b32 s{sT[2]}, s{sT[2]}, 8"); e(f"s_add_u32 s{sHF1}, s{sT[0]}, s{sT[2]}")
    e(f"s_xor_b32 s{sT[2]}, s{sT[2]}, 512"); e(f"s_add_u32 s{sHF2}, s{sT[0]}, s{sT[2]}"); e(f"s_add_u32 s{sHF2}, s{sHF2}, 32")
    e(f"s_lshl_b32 s{sHFc}, s{sFc}, 1"); e(f"s_add_u32 s{sHFc}, s{sHFc}, {HF}"); e(f"s_add_u32 s{sHFd}, s{sHFc}, 32")
    e(f"s_lshr_b32 s{sPS2}, s{sJ}, 1"); e(f"s_mul_i32 s{sPS2}, s{sPS2}, {SL}"); e(f"s_add_u32 s{sPS2}, s{sPS2}, s{sLv}")
    def hst(reg, so, im): return f"buffer_store_dwordx4 {vr(reg,4)}, v{vL16}, {srd(dWS)}, s{so} offen offset:{im} {hsc}"
    done = set()
    def hpoll(sreg, tag):
        def f():
            while tag not in done: g.fq.popleft().fn()
            g.poll_issue(vP8, sreg, "hp")
        return f
    def hflag(sreg, n, tag, delay):
        def later():
            g.fq.appendleft(Fill(lambda: (g.flag_store(dWS, sreg, 0, 2*ps + n, vT[5], sT[5]), done.add(tag)), 3, 0))
            g.fq.appendleft(Fill(lambda: g.wait(vm=tag), 1, g.mf + delay))
        g.Ffn(later, 0)
    GU = [(vTr, vTr, T0, 1024, 256), (vTr, vTr, T1, 1024, 256)]
    MXA = (vTrM1, vTrM2, 0, 512, 0)
    MXB = (vLA, None, 0, 1024, 0)
    ack = 14 if hsc == "" else 36
    def hl(n):
        so, im = g.soff((n >> 1) * 1024)
        return lambda: g.vm(f"buffer_load_dwordx4 {vr(X+4*(n % 28),4)}, v{vA0 + (n & 1)}, {srd(dWSB)}, {so} offen offset:{im} sc1", f"h{n}_")
    LD = opt.lead if ps else opt.lead0
    posts1 = load_x(g, 2*ps + 1, sTB3, True, after_poll=(lambda: g.barrier()) if ps == 0 else None, stbase=B1)
    for i in range(4): posts1.setdefault(12 + i, []).append(lambda i=i: stload(g, i, vA1, B1 + 16, "st2"))
    def x2load(j):
        so, im = g.soff(j * 1024)
        return lambda: g.vm(f"buffer_load_dwordx4 {vr(X+4*j,4)}, v{vA1}, {srd(dWS)}, {so} offen offset:{im} sc1", f"y{j}")
    nx = 0
    for j in range(16, 28):
        for _ in range(1 + (j & 1)):
            posts1.setdefault(j, []).append(x2load(nx)); nx += 1
    posts1["xe"] = [lambda: e(f"v_mov_b32 v{vXE}, v{vXE2}")]
    def hook1():
        stats_fill(g, 3, B1, "st", vXE, vC1, vSD, earliest=g.mf + 36)
        stats_fill(g, 3, B1 + 16, "st2", vXE2, vC2, vSD2, zero=False, earliest=g.mf + 62)
        g.mark()
    posts3 = {j: [x2load(j + nx)] for j in range(28 - nx)}
    def hook3():
        g.stamp("seg12 done")
        m0 = g.mf
        h_epilogue(g, B0, B0+16, 16, [(hst(B0, sH1, 0), None), (hst(B0+4, sH1, 1024), None)], g.mf + 3, vC1, vSD)
        h_epilogue(g, B2, B2+8, 8, [(hst(B2, sPS, 0), "h1")], 0, vC1, vSD)
        g.bg_next = m0 + 24; g.bg_period = 3
        g.dma_tile(dWS, vL16, sPS2, MXF, 1024, sLv, SA, "dM", mode="bg", flags="sc1")
        if ps == 0 and opt.w4s3: w4setup()
    if ps == 0 and opt.pfw4 >= 0:
        (posts1 if opt.pfw4 < 28 else posts3).setdefault(opt.pfw4 % 28, []).append(lambda: g.prefetch(dWS, WDF, 12544, vA2, sT[0], flags="sc1"))
    posts4 = {j: [] for j in range(28)}
    posts4[28 - LD - 5].append(hpoll(sHFc, "h1"))
    posts4[28 - LD - 1].append(lambda: g.poll_check(vP8, sHFc, "hp", 2*ps + 2))
    for n in range(LD): posts4[28 - LD + n].append(hl(n))
    def hook4():
        g.stamp("seg3 done")
        g.flush()
        if ps == 0:
            cs_final(g, [(CS + 6, 0)], 512, B2, vA2, True)
            g.mark()
        g.F(f"s_mul_i32 s{sT[1]}, s{sV}, {SL}"); g.F(f"s_add_u32 s{sT[1]}, s{sT[1]}, {HBUF + inst_off(ps)}")
        for b in range(2):
            g.F(f"s_xor_b32 s{sT[0]}, s{sTBO}, {b}"); g.F(f"s_mul_i32 s{sT[0]}, s{sT[0]}, {4*SL}")
            g.F(f"s_add_u32 s{sT[0]}, s{sT[0]}, s{sT[1]}")
            g.F(f"v_add_u32 v{vA0+b}, s{sT[0]}, v{vL16}")
        h_epilogue(g, B1, B1+16, 8, [(hst(B1, sH2, 0), None)], g.mf + 3, vC2, vSD2)
        hflag(sHF1, 2, "h1", 0)
        h_epilogue(g, B1, B1+16, 16, [None, (hst(B1+4, sH2, 1024), "h2")], 0, vC2, vSD2, start=8)
        unpack_res(g, True)
        g.F(f"s_add_u32 s{sH2}, s{sH2}, 8192")
        hflag(sHF2, 1, "h2", ack - 4)
    def w4setup():
        e(f"s_mul_i32 s{sT[0]}, s{sCTO}, {112*1024}"); e(f"s_add_u32 s{sT[0]}, s{sT[0]}, {WDF}"); e(f"v_add_u32 v{vA3}, s{sT[0]}, v{vL16}")
        e(f"s_xor_b32 s{sT[0]}, s{sCTO}, 1"); e(f"s_mul_i32 s{sT[0]}, s{sT[0]}, {112*1024}"); e(f"s_add_u32 s{sT[0]}, s{sT[0]}, {WDF}")
        e(f"v_add_u32 v{vT[4]}, s{sT[0]}, v{vL16}")
        e(f"s_bfe_u32 s{sT[0]}, s{sP}, 0x10001"); e(f"s_lshl_b32 s{sT[0]}, s{sT[0]}, 10")
        e(f"s_lshl_b32 s{sT[2]}, s{sV}, 13"); e(f"s_add_u32 s{sT[2]}, s{sT[2]}, s{sT[0]}")
        e(f"s_xor_b32 s{sT[3]}, s{sT[2]}, 1024")
        e(f"s_lshl_b32 s{sT[4]}, s{sV}, 12")
        for kk in range(28):
            if kk < 8: pre1, im = [f"s_lshl_b32 s{sBG}, s{sT[3]}, 1", f"s_add_u32 s{sBG}, s{sBG}, {(kk>>1)*4096}"], (kk & 1) * 1024
            elif kk < 12: pre1, im = [f"s_add_u32 s{sBG}, s{sT[3]}, {64*1024 + (kk-8)*2048}"], 0
            elif kk < 20: pre1, im = [f"s_lshl_b32 s{sBG}, s{sT[2]}, 1", f"s_add_u32 s{sBG}, s{sBG}, {((kk-12)>>1)*4096}"], (kk & 1) * 1024
            else:
                sl = (kk - 20) >> 1
                if kk & 1 == 0: pre1, im = [f"s_add_u32 s{sBG}, s{sT[2]}, {64*1024 + sl*2048}"], 0
                else: pre1, im = [f"s_add_u32 s{sBG}, s{sT[4]}, {96*1024 + sl*1024}"], 0
            for a in range(2 - 2*opt.now4):
                g.BG(pre1 if a == 0 else [], f"buffer_load_dwordx4 {R(W4+4*(2*kk+a),4)}, v{vA3 if a == 0 else vT[4]}, {srd(dWSB)}, s{sBG} offen offset:{im} sc1", f"w4_{kk}")
    def gate4():
        g.wait(vm="dM"); e("s_barrier")
    S1 = dict(tiles=GU + [MXA], accs=[B0, B0+16, B2], xa=False, css=[CS+0, CS+2, CS+4], xtag="x", posts=posts1, hook=hook1)
    S3 = dict(tiles=GU, accs=[B1, B1+16], xa=False, css=[CS+0, CS+2], xtag="y", posts=posts3, hook=hook3)
    S4 = dict(tiles=[MXA, MXB], accs=[B0, B0+16], xa=False, css=[CS+4, CS+6], posts=posts4, hook=hook4, gate=gate4)
    if ps == 0:
        pre, steps = gemm_chain(g, [S1, S3])
        for f in pre: f()
        g.stream(steps); g.flush()
        e(f"v_add_u32 v{vA2}, s{sLv}, v{vLA}")
        cs_block(g, [(vA2, 0, 1024, None, "dM")], [B0])
        cs_publish(g, [B0], 512, vA2)
        g.wait(lg="all")
        if not opt.w4s3: w4setup()
        g.bg_next = g.mf; g.bg_period = opt.bg3
        pre, steps = gemm_chain(g, [S4])
    else:
        pre, steps = gemm_chain(g, [S1, S3, S4])
    for f in pre: f()
    g.stream(steps)
    g.flush()
    if ps == 0: g.barrier()
    g.stamp("seg4 done")
    m0 = g.mf
    h_epilogue(g, B0, B0+8, 8, [(hst(B0, sH2, 0), None)], g.mf + 2, vC2, vSD2)
    h_epilogue(g, B0+16, B0+24, 8, [(hst(B0+16, sH2, 1024), "h3")], 0, vC2, vSD2)
    hflag(sHF2, 2, "h3", ack)
    if ps == 0:
        g.bg_period = 2
        g.Ffn(lambda: g.bg_flush(), 1, m0 + 60)
        def kq():
            g.bg_period = 3
            g.dma_tile(dWS, vL16, sW1, W1F, 1024, sLv, SA, "dK", mode="bg", flags="sc1")
        g.Ffn(kq, 0)
    reduce_addr(g, 2*ps + 2, True)
    c1 = max(24 - LD, 5); c2 = 31 if hsc == '' else 37
    steps = []
    nxt = LD
    for kk in range(28):
        for b in range(2):
            n = 2*kk + b
            for a in range(2):
                i = 2*b + a
                pre = []
                if a == 0:
                    pre.append(lambda n=n: g.wait(vm=f"h{n}_"))
                    if ps == 0 and b == 0: pre.append(lambda kk=kk: g.wait(vm=f"w4_{kk}"))
                post = []
                if a == 1:
                    if n == c1 - 5: post.append(hpoll(sHFd, "h2"))
                    if n == c2 - 5: post.append(hpoll(sHFd, "h3"))
                    if n == c1: post.append(lambda: g.poll_check(vP8, sHFd, "hp", 2*ps + 1))
                    if n == c2: post.append(lambda: g.poll_check(vP8, sHFd, "hp", 2*ps + 2))
                    k = 0
                    while nxt < 56 and nxt <= n + LD and k < 2 and (nxt < 40 or n >= c2) and (nxt < 24 or n >= c1):
                        post.append(hl(nxt)); nxt += 1; k += 1
                    if ps == 0 and n == 47:
                        def pfv():
                            e(f"s_lshr_b32 s{sT[5]}, s{sWID}, 3"); e(f"s_mul_i32 s{sT[5]}, s{sT[5]}, {3*SL}")
                            e(f"s_and_b32 s{sBG}, s{sWID}, 7"); e(f"s_mul_i32 s{sBG}, s{sBG}, 7168"); e(f"s_add_u32 s{sT[5]}, s{sT[5]}, s{sBG}")
                            e(f"s_add_u32 s{sT[5]}, s{sT[5]}, {W1F + SL}")
                            e(f"v_lshlrev_b32 v{vA2}, 3, v{vL16}"); e(f"v_min_u32 v{vA2}, {55*128}, v{vA2}")
                            g.vm(f"buffer_load_dword {R(JUNK,1)}, v{vA2}, {srd(dWS)}, s{sT[5]} offen sc1")
                        post.append(pfv)
                c = 0 if (kk == 0 and i != 0) else None
                steps.append((pre, MF(ACC4[i], W4 + 4*(2*kk + a), X + 4*(n % 28), c), post))
    assert nxt == 56
    g.stream(steps)
    g.flush(); g.bg_flush()
    g.stamp("p4 gemm done")
    def vdma():
        g.barrier()
        g.dma_tile(dWS, vL16, sW1, W1F + SL, 1024, sLv, RB, "dV", flags="sc1")
    reduce_store(g, 2*ps + 2, after_reads=vdma if ps == 0 else None)
    g.stamp("x2 published")

def rest(g, slow):
    g.sc = "sc1" if slow else ""
    seq = [lambda: phase1c(g, 0), lambda: phase2(g, 0), lambda: phase34(g, 0),
           lambda: (phase1a(g, 1), phase1b(g, 1), phase1c(g, 1)), lambda: phase2(g, 1), lambda: phase34(g, 1)]
    for i, f in enumerate(seq):
        if i >= opt.stop: break
        f()
    e = g.e
    e(f"s_add_u32 s{sT[0]}, s{sE}, 17")
    e(f"v_mov_b32 v{vT[0]}, s{sT[0]}")
    e(f"s_lshl_b32 s{sT[1]}, s2, 2"); e(f"s_add_u32 s{sT[1]}, s{sT[1]}, s{sV}")
    e(f"s_cmp_lg_u32 s{sT[1]}, 0"); e(f"s_cselect_b32 s{sT[2]}, {BIG}, {EPOCH}")
    g.vm(f"buffer_store_dword v{vT[0]}, v{vL0}, {srd(dWS)}, s{sT[2]} offen sc1")
    if opt.stamps:
        g.stamp("end")
        e(f"v_writelane_b32 v0, s{sTO}, 63")
        e(f"s_lshl_b32 s{sT[1]}, s{sT[1]}, 8"); e(f"s_add_u32 s{sT[1]}, s{sT[1]}, {STAMP}")
        e(f"v_lshrrev_b32 v{vT[1]}, 2, v{vL16}")
        g.vm(f"buffer_store_dword v0, v{vT[1]}, {srd(dWS)}, s{sT[1]} offen")
    e("s_endpgm")
    g.flush_tail()

def build():
    g = G()
    prologue(g)
    phase1a(g, 0)
    phase1b(g, 0)
    placement_check(g)
    st = g.state(); ns = g.nstamp; mf = g.mf; bg = list(g.bg); pend = dict(g.pending); bn = g.bg_next
    assert not g.fq
    rest(g, False)
    g.label("L_fast_end")
    g.label("L_slow")
    g.set_state(st); g.nstamp = ns; g.mf = mf; g.bg = collections.deque(bg); g.pending = dict(pend); g.bg_next = bn
    g.e("s_nop 7")
    rest(g, True)
    g.label("L_end")
    g.e("s_endpgm")
    hdr = open(os.path.join(os.path.dirname(os.path.abspath(__file__)), "..", "cdna_kernels", NAME + ".s.ref")).read().split("\n")
    head = [l for l in hdr if l.startswith(";") and "@launch" not in l]
    out = "\n".join(head) + "\n; @launch grid=(256,1,1) block=(256,1,1) lds=163840\n"
    out += '.amdgcn_target "amdgcn-amd-amdhsa--gfx950"\n.text\n'
    out += f".globl {NAME}_kernel\n.p2align 8\n.type {NAME}_kernel,@function\n{NAME}_kernel:\n"
    out += g.text()
    out += f""".section .rodata,"a"
.p2align 6
.amdhsa_kernel {NAME}_kernel
  .amdhsa_next_free_vgpr 512
  .amdhsa_next_free_sgpr 102
  .amdhsa_accum_offset 256
  .amdhsa_group_segment_fixed_size 0
  .amdhsa_kernarg_size 80
  .amdhsa_user_sgpr_count 2
  .amdhsa_user_sgpr_kernarg_segment_ptr 1
  .amdhsa_system_sgpr_workgroup_id_x 1
.end_amdhsa_kernel
"""
    return out, g

if __name__ == "__main__":
    outp = None
    for a in sys.argv[1:]:
        if "=" in a:
            k, v = a.split("="); setattr(opt, k, int(v))
        else: outp = a
    txt, g = build()
    outp = outp or os.path.join(os.path.dirname(os.path.abspath(__file__)), "..", "cdna_kernels", NAME + ".s")
    open(outp, "w").write(txt)
    if opt.stamps: open(outp + ".names", "w").write("\n".join(g.names))
    print("wrote", outp, "instructions", sum(1 for i in g.ins if not i.label), "auto nops", g.nops_inserted, "stamps", g.nstamp)
```

```python
import re

TRANS = ("v_exp_f32", "v_log_f32", "v_rcp_f32", "v_rsq_f32", "v_sqrt_f32", "v_sin_f32", "v_cos_f32")

def vr(b, n=1):
    return f"v{b}" if n == 1 else f"v[{b}:{b+n-1}]"
def ar(b, n=1):
    return f"a{b}" if n == 1 else f"a[{b}:{b+n-1}]"
def sr(b, n=1):
    return f"s{b}" if n == 1 else f"s[{b}:{b+n-1}]"
def R(b, n=4):
    return vr(b, n) if b < 256 else ar(b - 256, n)

_tok = re.compile(r"^-?(?:abs\()?([vas])(?:(\d+)|\[(\d+):(\d+)\])\)?$")
def regs_of(tok):
    tok = tok.strip()
    if tok == "vcc": return ("s", {106, 107})
    if tok == "exec": return ("s", {126, 127})
    if tok == "m0": return ("s", {124})
    m = _tok.match(tok)
    if not m: return (None, set())
    k = m.group(1)
    lo = int(m.group(2) if m.group(2) is not None else m.group(3))
    hi = int(m.group(4)) if m.group(4) is not None else lo
    s = set(range(lo, hi + 1))
    if k == "a": return ("v", {x + 256 for x in s})
    return (k, s)

class Ins:
    __slots__ = ("text", "op", "cls", "vdef", "vuse", "sdef", "suse", "srcc", "srcab", "states", "wide_store", "label")
    def __init__(self, text):
        self.text = text
        t = text.split(";")[0].strip()
        self.label = t.endswith(":") or t.startswith(".") or t == ""
        self.vdef = set(); self.vuse = set(); self.sdef = set(); self.suse = set()
        self.srcc = set(); self.srcab = set(); self.wide_store = set()
        self.states = 1; self.cls = "other"; self.op = ""
        if self.label:
            self.states = 0; return
        parts = t.split(None, 1)
        op = self.op = parts[0]
        rest = parts[1] if len(parts) > 1 else ""
        ops = []
        for o in rest.split(","):
            o = o.strip()
            if not o: continue
            ops.append(o.split()[0])
        mods = rest.split()
        def use(tok):
            k, s = regs_of(tok)
            if k == "v": self.vuse |= s
            elif k == "s": self.suse |= s
        def deff(tok):
            k, s = regs_of(tok)
            if k == "v": self.vdef |= s
            elif k == "s": self.sdef |= s
        if op == "s_nop":
            self.states = int(ops[0], 0) + 1; self.cls = "salu"
        elif op.startswith("v_mfma"):
            self.cls = "mfma"
            deff(ops[0]); use(ops[1]); use(ops[2]); use(ops[3])
            self.srcab = regs_of(ops[1])[1] | regs_of(ops[2])[1]
            k, s = regs_of(ops[3]); self.srcc = s if k == "v" else set()
        elif op.startswith("v_"):
            self.cls = "trans" if op.replace("_e32", "").replace("_e64", "") in TRANS else "valu"
            if op.startswith("v_permlane") and "swap" in op:
                for o in ops[:2]: deff(o); use(o)
            elif op.startswith(("v_add_co", "v_sub_co", "v_addc_co", "v_subb_co", "v_subrev_co")):
                deff(ops[0]); deff(ops[1])
                for o in ops[2:]: use(o)
            else:
                deff(ops[0])
                for o in ops[1:]: use(o)
                if op.startswith(("v_fmac", "v_dot2c", "v_pk_fmac", "v_writelane")): use(ops[0])
        elif op.startswith(("buffer_wbl2", "buffer_inv")):
            self.cls = "vmem"
        elif op.startswith(("buffer_", "global_")):
            self.cls = "vmem"
            islds = "lds" in mods
            if op.startswith("buffer_load"):
                if islds:
                    for o in ops: use(o)
                    self.suse |= {124}
                else:
                    deff(ops[0])
                    for o in ops[1:]: use(o)
            elif op.startswith("global_load_lds"):
                for o in ops: use(o)
                self.suse |= {124}
            elif op.startswith("global_load"):
                deff(ops[0])
                for o in ops[1:]: use(o)
            else:
                for o in ops: use(o)
                data = ops[0] if op.startswith("buffer_") else ops[1]
                if "x4" in op or "x3" in op: self.wide_store = regs_of(data)[1]
        elif op.startswith("ds_"):
            self.cls = "ds"
            if op.startswith(("ds_read", "ds_bpermute", "ds_permute", "ds_swizzle")):
                deff(ops[0])
                for o in ops[1:]: use(o)
            else:
                for o in ops: use(o)
        elif op.startswith("s_"):
            self.cls = "salu"
            if op.startswith(("s_cmp", "s_cbranch", "s_branch", "s_waitcnt", "s_barrier", "s_endpgm", "s_sleep", "s_setprio", "s_setpc", "s_bitcmp")):
                for o in ops: use(o)
            else:
                if ops: deff(ops[0])
                for o in ops[1:]: use(o)

def required_states(p, c):
    n = 0
    pv = p.cls in ("valu", "trans")
    cv = c.cls in ("valu", "trans")
    if p.cls == "mfma":
        big = "32x32" in p.op
        lat = 12 if big else 8
        if c.cls == "mfma":
            if p.vdef & c.srcab: n = max(n, lat)
            if p.vdef & c.srcc and p.vdef != c.srcc: n = max(n, lat - 2)
            if (p.vdef & c.vdef) and not (p.vdef & c.srcc): n = max(n, lat)
        elif cv or c.cls in ("vmem", "ds"):
            if p.vdef & (c.vuse | c.vdef): n = max(n, lat)
            if cv and (p.srcc & c.vdef): n = max(n, 7 if big else 3)
    if pv:
        if c.cls == "mfma" and (p.vdef & c.vuse): n = max(n, 2)
        if c.cls == "mfma" and (p.sdef & {126, 127}): n = max(n, 4)
        if p.cls == "trans" and cv and c.cls != "trans" and (p.vdef & c.vuse): n = max(n, 1)
        if p.cls == "trans" and c.cls != "valu" and (p.vdef & c.vuse): n = max(n, 1)
        if c.op.startswith("v_permlane") and (p.vdef & c.vuse): n = max(n, 2)
        if c.op.startswith(("v_readfirstlane", "v_readlane")) and (p.vdef & c.vuse): n = max(n, 1)
        if "dpp" in c.text or "quad_perm" in c.text or "row_" in c.text:
            if p.vdef & c.vuse: n = max(n, 2)
        if p.sdef:
            if cv and (p.sdef & c.suse): n = max(n, 2)
            if c.op.startswith("v_cndmask") and "vcc" in c.text and (p.sdef & {106, 107}): n = max(n, 2)
            if c.cls == "vmem" and (p.sdef & c.suse): n = max(n, 5)
            if c.cls == "salu" and (p.sdef & c.suse) and not c.op.startswith("s_cbranch"): n = max(n, 1)
        if p.op.startswith("v_dot") and (p.vdef & (c.vuse | c.vdef)):
            if not (c.op == p.op and not (p.vdef & _dot_ab(c))): n = max(n, 3)
    if p.cls == "vmem" and p.wide_store:
        if (p.wide_store & c.vdef): n = max(n, 2)
    if p.cls == "salu" and (124 in p.sdef) and c.cls == "vmem" and (124 in c.suse): n = max(n, 1)
    if p.cls == "salu" and (p.sdef & {126, 127}) and c.cls == "mfma": n = max(n, 1)
    return n

def _dot_ab(c):
    t = c.text.split(";")[0].split(None, 1)[1].split(",")
    s = set()
    for o in t[1:3]:
        k, r = regs_of(o.strip().split()[0])
        if k == "v": s |= r
    return s

class Asm:
    def __init__(self):
        self.ins = []
        self.vmq = []
        self.lgq = []
        self.nlabel = 0
        self.nops_inserted = 0
        self.tail = []
    def e(self, text):
        c = Ins(text)
        if not c.label:
            need = 0; dist = 0
            k = 0; after = 0
            for p in reversed(self.ins):
                if dist >= 14: break
                if p.label: continue
                r = required_states(p, c)
                d = dist
                big = p.cls == "mfma" and "32x32" in p.op
                if big and k: d = max(d, 7*k + after)
                if r > d: need = max(need, r - d)
                if big:
                    if k == 0: after = dist
                    k += 1
                dist += p.states
            if need > 0:
                self.nops_inserted += 1
                self.ins.append(Ins(f"s_nop {need-1}"))
        self.ins.append(c)
        return c
    def __call__(self, text):
        return self.e(text)
    def label(self, name):
        self.ins.append(Ins(name + ":"))
    def newlabel(self, base="L"):
        self.nlabel += 1
        return f"{base}_{self.nlabel}"
    def comment(self, s):
        self.ins.append(Ins("; " + s))
    def vm(self, text, tag=None):
        self.e(text); self.vmq.append(tag)
    def ds(self, text, tag=None):
        self.e(text); self.lgq.append(tag)
    def _cnt(self, q, tag, mx):
        if tag is None: return None
        if tag == "all":
            n = 0 if q else None
        else:
            idx = [i for i, t in enumerate(q) if t == tag]
            if not idx: return None
            n = len(q) - 1 - idx[-1]
        if n is None: return None
        n = min(n, mx)
        del q[:len(q) - n]
        return n
    def wait(self, vm=None, lg=None):
        a = self._cnt(self.vmq, vm, 63)
        b = self._cnt(self.lgq, lg, 15)
        if a is None and b is None: return 0
        s = "s_waitcnt"
        if a is not None: s += f" vmcnt({a})"
        if b is not None: s += f" lgkmcnt({b})"
        self.e(s)
        return 1
    def state(self):
        return (list(self.vmq), list(self.lgq))
    def set_state(self, st):
        self.vmq = list(st[0]); self.lgq = list(st[1])
    def text(self):
        out = []
        for i in self.ins:
            out.append(i.text if i.label and not i.text.startswith(";") else "  " + i.text)
        return "\n".join(out) + "\n"

def cost_of(text):
    op = text.split()[0]
    if op.replace("_e32", "").replace("_e64", "") in TRANS: return 2
    if op.startswith("v_mfma"): return 2
    return 1
```

```python
import sys, os, struct, collections
sys.path.insert(0, os.path.dirname(os.path.abspath(__file__)))
from asmlib import *

NAME = "interleave_layers__linear_attn_block__glu_gated_glu__prompt"

class Opt:
    noreuse = 0
    stop = 99
    stamps = 0
    force_slow = 0
    budget = 6
    bg1 = 6
    noT = 0
    notouch = 0
    now4 = 0
    pfmode = 3
    x0n = 2
    vat = 3
    nt = 0
    tlb = 0
    wpos = 0
    bg2 = 3
    t0n = 2
    tdelay = 0
    pfmx = 1
    tmode = 1
    warm = 1
    osep = 1
    outat = 0
    flagat = 7
    warmat = 9
    htouch = 0
    ack0 = 36
    c20 = 37
    tailg = 6
    mxdelay2 = 24
    n0 = 6
    n2 = 7
    lrate = 8
    mxdelay = 0
    xp = 0
    tflush = 1
    wb = -1
    wb2 = -1
    lead0 = 10
    pfw4 = -1
    w4s3 = 1
    pfw2 = 0
    osc = 1
    touchat = 2
    prepat = 36
    fine = 0
    kvfrom = 5
    noprep = 0
    gat0 = 18
    mxat = 1
    gat = 8
    lead = 10
    bg3 = 3
opt = Opt()

def f32(x): return "0x%08x" % struct.unpack("<I", struct.pack("<f", x))[0]
LOG2E = 1.4426950408889634
LN2 = 0.6931471805599453
BIG = "0x40000000"

EPOCH = 0x0; WF = 0x200000; XINFO = 0x1000; OF = 0x2000; HF = 0x4000; XF = 0x6000
MXF = 0x80000; PART = [0x100000, 0x180000]; OBUF = 0x300000; XBUF = 0x500000
WDF = 0x700000; HBUF = 0x900000; W1F = 0x1000000; INST = 0x1000000; STAMP = 0x8000000
XB = 32768
WS_SIZE = 0x10000000
SL = 28672
T0, T1, T2, SA, RB = 0, SL, 2*SL, 3*SL, 4*SL
MISC = RB + SL; MB = 5120; SMALL = 4096
BLK = 12288
sV, sX, sJ, sHS, sTB = 3, 4, 5, 6, 7
dX0, dWQ, dWO, dWG, dWU, dWD, dOUT, dWS, dWSB, dMX = 8, 12, 16, 20, 24, 28, 32, 36, 40, 44
sHALF = 48; sONES = 50
sE, sTO, sP, sC, sG = 52, 53, 54, 55, 56
sK = {i: 56 + i for i in range(1, 7)}
sLv, sBv, sW1, sWM, sW3, sW2, sMv, sWID = 63, 64, 65, 66, 68, 69, 70, 71
sFl, sFc = 72, 73
sLN2, sBF1 = 74, 75
sTBO, sCTO = 76, 77
sT = [78, 79, 80, 81, 82, 83]
sNEED = 84; sKA = 84; sXCC = 85; sST = 86; sTAG = 88
sTB3 = 89
sH1, sH2, sHF1, sHF2, sHFc, sHFd, sPS = 90, 91, 92, 93, 94, 95, 96
sBG = 97
sK[7] = 98
sPS2 = 99
vL16, vMX, vL0, vDq, vDo, vDg, vTr, vRow, vLA, vStW, vP8, vPx, vTrA, vPoll = 1,2,4,5,6,7,8,9,10,11,12,13,14,15
vLT2 = vMX
vRES = 16
X = 24
B0, B1, B2 = 136, 168, 200
AF = 216
vXE = 240
vC1, vSD = 244, 245
vA0, vA1, vA2, vA3 = 246, 247, 248, 249
vT = [250, 251, 252, 253, 254, 255]
W4 = 256
CS = 256 + 224
ONES = 256 + 236
JUNK = 256 + 240
ACC4 = [B1, B1 + 16, B2, AF]
GR = B1 + 16

def srd(d): return sr(d, 4)
def MF(d, a, b, c=None):
    cc = "0" if c == 0 else R(d if c is None else c, 16)
    return f"v_mfma_f32_32x32x16_bf16 {R(d,16)}, {R(a,4)}, {R(b,4)}, {cc}"

class Fill:
    def __init__(s, fn, cost=1, earliest=0): s.fn = fn; s.cost = cost; s.earliest = earliest
class Mark(Fill): pass

class G(Asm):
    def __init__(s):
        super().__init__()
        s.mf = 0
        s.fq = collections.deque()
        s.bg = collections.deque(); s.bg_period = 8; s.bg_next = 0
        s.nstamp = 0; s.pending = {}; s.names = []
        s.sc = ""
    def F(s, text, earliest=0): s.fq.append(Fill(lambda: s.e(text), cost_of(text), earliest))
    def _pend(s, tag, d):
        if tag is not None: s.pending[tag] = s.pending.get(tag, 0) + d
    def Fvm(s, text, tag=None, earliest=0):
        s._pend(tag, 1); s.fq.append(Fill(lambda: (s._pend(tag, -1), s.vm(text, tag)), 1, earliest))
    def Fds(s, text, tag=None, earliest=0):
        s._pend(tag, 1); s.fq.append(Fill(lambda: (s._pend(tag, -1), s.ds(text, tag)), 1, earliest))
    def wait(s, vm=None, lg=None):
        while s.pending.get(vm) and s.bg: s.bg_step()
        assert not s.pending.get(vm) and not s.pending.get(lg), (vm, lg)
        return super().wait(vm, lg)
    def Fwait(s, vm=None, lg=None, earliest=0): s.fq.append(Fill(lambda: s.wait(vm, lg), 1, earliest))
    def Ffn(s, fn, cost=1, earliest=0): s.fq.append(Fill(fn, cost, earliest))
    def flush(s):
        while s.fq: s.fq.popleft().fn()
    def mark(s): s.fq.append(Mark(lambda: None, 0, 0))
    def flush_until_mark(s):
        if any(isinstance(f, Mark) for f in s.fq):
            while True:
                f = s.fq.popleft(); f.fn()
                if isinstance(f, Mark): break
    def BG(s, pre, text, tag):
        s._pend(tag, 1); s.bg.append((pre, text, tag))
    def bg_step(s):
        if not s.bg: return 0
        pre, text, tag = s.bg.popleft()
        for t in pre: s.e(t)
        s._pend(tag, -1); s.vm(text, tag)
        return len(pre) + 1
    def bg_flush(s):
        while s.bg: s.bg_step()
    def stream(s, steps):
        for i, (pre, m, post) in enumerate(steps):
            for f in pre: f()
            s.e(m); s.mf += 1
            n0 = len(s.ins)
            for f in post: f()
            used = len(s.ins) - n0
            res = 1 if (i + 1 < len(steps) and steps[i + 1][0]) else 0
            if s.bg and s.mf >= s.bg_next and used + len(s.bg[0][0]) + 1 <= opt.budget - res:
                used += s.bg_step(); s.bg_next = s.mf + s.bg_period
            while s.fq and s.fq[0].earliest <= s.mf and used + s.fq[0].cost <= opt.budget - res:
                f = s.fq.popleft(); n0 = len(s.ins); f.fn()
                used += max(f.cost, len(s.ins) - n0)
    def stamp(s, name=""):
        if not opt.stamps: return
        if len(s.names) == s.nstamp: s.names.append(name)
        s.wait(lg="all")
        s.e(f"{'s_memrealtime' if opt.stamps == 1 else 's_memtime'} {sr(sST,2)}")
        s.e("s_waitcnt lgkmcnt(0)")
        s.e(f"v_writelane_b32 v0, s{sST}, {s.nstamp}")
        s.nstamp += 1
    def barrier(s, vm=None):
        s.wait(vm=vm, lg="all")
        s.e("s_barrier")
    def dma_tile(s, d, vpat, sbase, add, step, m0s, m0add, tag, mode="now", flags=""):
        for i in range(7):
            pre = [f"s_add_u32 m0, s{m0s}, {m0add + i*1024}", f"s_add_u32 s{sBG}, s{sbase}, {add + i*step}"]
            t = f"buffer_load_dwordx4 v{vpat}, {srd(d)}, s{sBG} offen {flags} lds"
            s.BG(pre, t, tag)
            if mode == "now":
                s.bg.rotate(1); s.bg_step()
    def soff(s, rel):
        return ("0" if rel < 4096 else f"s{sK[rel >> 12]}"), rel & 4095
    def poll_loop(s, vaddr, ssoff, width=16):
        L = s.newlabel("Lpoll"); D = s.newlabel("Lpd")
        s.label(L)
        s.e(f"buffer_load_dword v{vPoll}, v{vaddr}, {srd(dWS)}, s{ssoff} offen sc1")
        s.e(f"s_add_u32 s{sTO}, s{sTO}, 1")
        s.e(f"s_cmp_gt_u32 s{sTO}, 0x20000")
        s.e(f"s_cbranch_scc1 {D}")
        s.e("s_waitcnt vmcnt(0)")
        s.e(f"v_subrev_u32 v{vPoll}, s{sNEED}, v{vPoll}")
        s.e(f"v_cmp_le_u32 vcc, {width}, v{vPoll}")
        s.e(f"s_cbranch_vccnz {L}")
        s.label(D)
        s.vmq = []
    def set_need(s, n): s.e(f"s_add_u32 s{sNEED}, s{sE}, {n}")
    def poll_issue(s, vaddr, ssoff, tag):
        s.vm(f"buffer_load_dword v{vPoll}, v{vaddr}, {srd(dWS)}, s{ssoff} offen sc1", tag)
    def poll_check(s, vaddr, ssoff, tag, n):
        if opt.xp & 2 and n > 2: return
        Ls = s.newlabel("Lslow"); Lb = s.newlabel("Lback")
        s.set_need(n)
        s.wait(vm=tag)
        s.e(f"v_subrev_u32 v{vPoll}, s{sNEED}, v{vPoll}")
        s.e(f"v_cmp_le_u32 vcc, 16, v{vPoll}")
        s.e(f"s_cbranch_vccnz {Ls}")
        s.label(Lb)
        s.tail += [f"{Ls}:",
                   f"buffer_load_dword v{vPoll}, v{vaddr}, {srd(dWS)}, s{ssoff} offen sc1",
                   f"s_add_u32 s{sTO}, s{sTO}, 1", f"s_cmp_gt_u32 s{sTO}, 0x20000", f"s_cbranch_scc1 {Lb}",
                   "s_waitcnt vmcnt(0)",
                   f"v_subrev_u32 v{vPoll}, s{sNEED}, v{vPoll}", f"v_cmp_le_u32 vcc, 16, v{vPoll}",
                   f"s_cbranch_vccnz {Ls}", f"s_branch {Lb}"]
    def flag_store(s, d, sbase, add, n, vtmp, stmp):
        s.e(f"s_add_u32 s{stmp}, s{sE}, {n}")
        s.e(f"v_mov_b32 v{vtmp}, s{stmp}")
        if add:
            s.e(f"s_add_u32 s{stmp}, s{sbase}, {add}"); sbase = stmp
        s.vm(f"buffer_store_dword v{vtmp}, v{vL0}, {srd(d)}, s{sbase} offen {s.sc}")
    def flush_tail(s):
        for t in s.tail:
            if t.endswith(":"): s.label(t[:-1])
            else: s.ins.append(Ins(t))
        s.tail = []
    def prefetch(s, d, base, nlines, vtmp, stmp, sbase=None, flags=""):
        done = 0
        while done < nlines:
            per = min(64, -(-(nlines - done) // 128))
            s.e(f"s_mul_i32 s{stmp}, s{sWID}, {per*128}")
            s.e(f"s_add_u32 s{stmp}, s{stmp}, {base + done*128}")
            if sbase is not None: s.e(f"s_add_u32 s{stmp}, s{stmp}, s{sbase}")
            s.e(f"v_lshlrev_b32 v{vtmp}, 3, v{vL16}")
            if per < 64: s.e(f"v_min_u32 v{vtmp}, {(per-1)*128}, v{vtmp}")
            s.vm(f"buffer_load_dword {R(JUNK,1)}, v{vtmp}, {srd(d)}, s{stmp} offen {flags}")
            done += per * 128

def pf_rows(g, d, per_row, pitch_lines, first, total, vt0, vt1, st, flags=""):
    e = g.e
    done = 0
    magic = -(-(1 << 19) // per_row)
    while done < total:
        per = min(64, -(-(total - done) // 128))
        e(f"s_mul_i32 s{st}, s{sWID}, {per}")
        if done: e(f"s_add_u32 s{st}, s{st}, {done}")
        e(f"v_lshrrev_b32 v{vt0}, 4, v{vL16}")
        if per < 64: e(f"v_min_u32 v{vt0}, {per-1}, v{vt0}")
        e(f"v_add_u32 v{vt0}, s{st}, v{vt0}")
        if per_row & (per_row - 1) == 0: e(f"v_lshrrev_b32 v{vt1}, {per_row.bit_length()-1}, v{vt0}")
        else:
            e(f"v_mul_u32_u24 v{vt1}, {magic}, v{vt0}"); e(f"v_lshrrev_b32 v{vt1}, 19, v{vt1}")
        e(f"v_mul_u32_u24 v{vt1}, {pitch_lines - per_row}, v{vt1}")
        e(f"v_add_lshl_u32 v{vt0}, v{vt0}, v{vt1}, 7")
        g.vm(f"buffer_load_dword {R(JUNK,1)}, v{vt0}, {srd(d)}, 0 offen offset:{first*128} {flags}")
        done += per * 128

def obase(ps): return (3*INST + INST*ps + HBUF) if (opt.noreuse or (ps == 0 and opt.osep)) else HBUF
def inst_off(i): return INST * i if opt.noreuse else 0

def cs_block(g, tiles, accs, wb=None):
    seq = [(t, i) for t in range(len(tiles)) for i in range(7)]
    def rd(n):
        t, i = seq[n]
        va, off, ks, sec, tag = tiles[t]
        def f():
            if i == 0: g.wait(vm=tag)
            b = AF + 4 * (n % 6)
            if sec is None:
                g.ds(f"ds_read_b128 {vr(b,4)}, v{va} offset:{off + i*ks}", f"c{n}")
            else:
                g.ds(f"ds_read_b64_tr_b16 {vr(b,2)}, v{va} offset:{off + i*ks}")
                g.ds(f"ds_read_b64_tr_b16 {vr(b+2,2)}, v{va} offset:{off + i*ks + sec}", f"c{n}")
        return f
    for n in range(3): rd(n)()
    steps = []
    for n in range(len(seq)):
        post = [rd(n + 3)] if n + 3 < len(seq) else []
        if wb is not None:
            post.append(lambda n=n: g.ds(f"ds_write_b128 v{wb}, {vr(AF + 4*(n % 6),4)} offset:{tiles[seq[n][0]][1] + seq[n][1]*1024}"))
        steps.append(([lambda n=n: g.wait(lg=f"c{n}")], MF(accs[seq[n][0]], ONES, AF + 4*(n % 6), 0 if seq[n][1] == 0 else None), post))
    g.stream(steps)

def cs_publish(g, accs, off, vtmp, sa=False):
    g.e(f"v_lshrrev_b32 v{vtmp}, 2, v{vL16}"); g.e(f"v_and_b32 v{vtmp}, 0x7c, v{vtmp}"); g.e(f"v_add_u32 v{vtmp}, s{sLv if sa else sMv}, v{vtmp}")
    if sa: g.e(f"v_add_u32 v{vtmp}, {SA}, v{vtmp}")
    for k, a in enumerate(accs):
        g.ds(f"ds_write_b32 v{vtmp}, v{a} offset:{off + 128*k}")

def cs_final(g, items, off, tmp, vtmp, fill, sa=False):
    MB = 7168 if sa else 5120
    MISC = SA if sa else RB + SL
    F = g.F if fill else g.e
    D = g.Fds if fill else g.ds
    for k, (dst, mx) in enumerate(items):
        if k == 0 or mx != items[k-1][1]:
            F(f"v_lshrrev_b32 v{vtmp}, 2, v{vL16}")
            if mx:
                F(f"v_and_b32 v{tmp+4*k}, 64, v{vtmp}"); F(f"v_mul_u32_u24 v{tmp+4*k}, {2*MB//64}, v{tmp+4*k}")
                F(f"v_and_b32 v{vtmp}, 0x3c, v{vtmp}"); F(f"v_add_u32 v{vtmp}, v{vtmp}, v{tmp+4*k}")
            else:
                F(f"v_and_b32 v{vtmp}, 0x7c, v{vtmp}")
            F(f"v_add_u32 v{vtmp}, {MISC}, v{vtmp}")
        offs = (0, 64, MB, MB + 64) if mx else (0, MB, 2*MB, 3*MB)
        for q in range(4):
            D(f"ds_read_b32 v{tmp+4*k+q}, v{vtmp} offset:{off + 128*k + offs[q]}", "csr")
    if fill: g.Fwait(lg="csr", earliest=g.mf + 6)
    else: g.wait(lg="csr")
    n = len(items)
    for k in range(n):
        a = tmp + 4*k
        F(f"v_add_f32 v{a}, v{a}, v{a+1}"); F(f"v_add_f32 v{a+2}, v{a+2}, v{a+3}")
    for k in range(n): F(f"v_add_f32 v{tmp+4*k}, v{tmp+4*k}, v{tmp+4*k+2}")
    for k in range(n): F(f"v_cvt_pk_bf16_f32 v{tmp+4*k+1}, v{tmp+4*k}, v{tmp+4*k}")
    for k in range(n): F(f"v_lshlrev_b32 v{tmp+4*k+1}, 16, v{tmp+4*k+1}")
    for k in range(n): F(f"v_sub_f32 v{tmp+4*k+1}, v{tmp+4*k}, v{tmp+4*k+1}")
    for k in range(n): F(f"v_cvt_pk_bf16_f32 v{tmp+4*k}, v{tmp+4*k}, v{tmp+4*k+1}")
    for k in range(n): F(f"v_accvgpr_write_b32 {R(items[k][0],1)}, v{tmp+4*k}")

def prologue(g):
    e = g.e
    e("s_cmp_ge_u32 s2, 256")
    e("s_cbranch_scc1 L_end")
    if opt.stamps: e(f"{'s_memrealtime' if opt.stamps == 1 else 's_memtime'} s[100:101]")
    e(f"s_load_dwordx16 {sr(sKA,16)}, s[0:1], 0")
    e(f"s_load_dwordx4 s[80:83], s[0:1], 64")
    e(f"v_lshrrev_b32 v{vT[0]}, 6, v0")
    e(f"v_and_b32 v0, 63, v0")
    e(f"v_readfirstlane_b32 s{sV}, v{vT[0]}")
    e(f"v_lshlrev_b32 v{vL16}, 4, v0")
    e(f"s_and_b32 s{sX}, s2, 7")
    e(f"s_lshr_b32 s{sJ}, s2, 3")
    e(f"s_getpc_b64 s[78:79]")
    e(f"s_lshl_b32 s{sWID}, s{sJ}, 2")
    e(f"s_add_u32 s{sWID}, s{sWID}, s{sV}")
    e(f"s_min_u32 s{sP}, s{sWID}, (L_fast_end-{NAME}_kernel)/512-1")
    e(f"s_lshl_b32 s{sP}, s{sP}, 9")
    e(f"v_lshrrev_b32 v{vT[1]}, 1, v{vL16}")
    e(f"v_add_u32 v{vT[1]}, s{sP}, v{vT[1]}")
    g.vm(f"global_load_dword {R(JUNK,1)}, v{vT[1]}, s[78:79]", "warm")
    e(f"s_and_b32 s{sHS}, s{sJ}, 15")
    e(f"s_lshr_b32 s{sG}, s{sJ}, 4")
    e(f"s_lshl_b32 s{sP}, s{sX}, 1")
    e(f"s_add_u32 s{sG}, s{sG}, s{sP}")
    e(f"s_lshl_b32 s{sTB}, s{sG}, 2")
    e(f"s_add_u32 s{sTB}, s{sTB}, s{sV}")
    e(f"v_lshrrev_b32 v{vT[0]}, 2, v0")
    e(f"v_and_b32 v{vT[1]}, 3, v0")
    e(f"v_lshlrev_b32 v{vT[1]}, 4, v{vT[1]}")
    e(f"s_movk_i32 s{sP}, 2688")
    e(f"v_mad_u32_u24 v{vDq}, v{vT[0]}, s{sP}, v{vT[1]}")
    e(f"s_movk_i32 s{sP}, 896")
    e(f"v_mad_u32_u24 v{vDo}, v{vT[0]}, s{sP}, v{vT[1]}")
    e(f"s_movk_i32 s{sC}, 3584")
    e(f"v_mad_u32_u24 v{vDg}, v{vT[0]}, s{sC}, v{vT[1]}")
    e(f"s_mul_i32 s{sLv}, s{sV}, 7168")
    e(f"s_mul_i32 s{sW1}, s{sHS}, {3*SL}")
    e(f"s_add_u32 s{sW1}, s{sW1}, s{sLv}")
    e(f"s_mul_i32 s{sW3}, s{sV}, {112*3584}")
    e(f"s_lshl_b32 s{sP}, s{sJ}, 6")
    e(f"s_add_u32 s{sW3}, s{sW3}, s{sP}")
    e(f"s_mul_i32 s{sBv}, s{sV}, {BLK}")
    e(f"s_add_u32 s{sBv}, s{sBv}, {RB}")
    e(f"s_mul_i32 s{sMv}, s{sV}, {MB}")
    e(f"s_add_u32 s{sMv}, s{sMv}, {MISC}")
    xb = [sLN2, sBF1, sE, sTO]
    e(f"s_mul_i32 s{xb[0]}, s{sTB}, {32*896}")
    for q in range(1, 4): e(f"s_add_u32 s{xb[q]}, s{xb[0]}, {q*8*896}")
    e(f"v_lshrrev_b32 v{B0}, 3, v0"); e(f"v_lshrrev_b32 v{B0+1}, 4, v0"); e(f"v_xor_b32 v{B0+1}, v{B0+1}, v0")
    e(f"v_and_b32 v{B0+1}, 7, v{B0+1}"); e(f"v_mul_u32_u24 v{B0}, 896, v{B0}"); e(f"v_lshl_add_u32 v{B0}, v{B0+1}, 4, v{B0}")
    e(f"v_xor_b32 v{B0+1}, 64, v{B0}")
    e(f"s_mul_i32 s{sFc}, s{sX}, {256*896}")
    pU, pA, pB, pS0, pS1, pS2, pS3 = 57, 58, 59, 60, 61, 62, sW2
    pD0, pD1, pD2, pD3 = 48, 49, 50, 51
    e(f"s_lshl_b32 s{pU}, s2, 2"); e(f"s_add_u32 s{pU}, s{pU}, s{sV}")
    e(f"s_cmp_ge_u32 s2, 196")
    e(f"s_cbranch_scc1 L_prep2")
    e(f"s_mul_i32 s{pA}, s{pU}, 9363"); e(f"s_lshr_b32 s{pA}, s{pA}, 16")
    e(f"s_mul_i32 s{pB}, s{pA}, 7"); e(f"s_sub_u32 s{pB}, s{pU}, s{pB}")
    e(f"s_mul_i32 s{pS0}, s{pA}, 14336"); e(f"s_lshl_b32 s{pS1}, s{pB}, 7"); e(f"s_add_u32 s{pS0}, s{pS0}, s{pS1}")
    e(f"s_add_u32 s{pS1}, s{pS0}, 64")
    e(f"s_mul_i32 s{pD0}, s{pB}, {2*112*1024}")
    e(f"s_lshl_b32 s{pA}, s{pA}, 10"); e(f"s_add_u32 s{pD0}, s{pD0}, s{pA}"); e(f"s_add_u32 s{pD0}, s{pD0}, {WDF}")
    e(f"s_add_u32 s{pD1}, s{pD0}, {112*1024}")
    e(f"v_mov_b32 v{vA3}, v{vDo}")
    e(f"s_branch L_prep3")
    g.label("L_prep2")
    e(f"s_sub_u32 s{pS1}, s{pU}, 784")
    e(f"s_mul_i32 s{pA}, s{pS1}, 2341"); e(f"s_lshr_b32 s{pA}, s{pA}, 16")
    e(f"s_mul_i32 s{pB}, s{pA}, 28"); e(f"s_sub_u32 s{pB}, s{pS1}, s{pB}")
    e(f"s_mul_i32 s{pD0}, s{pA}, {2*SL}")
    e(f"s_lshl_b32 s{pD1}, s{pB}, 10"); e(f"s_add_u32 s{pD0}, s{pD0}, s{pD1}"); e(f"s_add_u32 s{pD0}, s{pD0}, {MXF}")
    e(f"s_cmp_ge_u32 s{pS1}, 224"); e(f"s_cselect_b32 s{pD0}, {BIG}, s{pD0}")
    e(f"s_add_u32 s{pD1}, s{pD0}, {SL}")
    e(f"s_mul_i32 s{pS0}, s{pB}, {16*3584}"); e(f"s_lshl_b32 s{pA}, s{pA}, 6"); e(f"s_add_u32 s{pS0}, s{pS0}, s{pA}")
    e(f"s_add_u32 s{pS0}, s{pS0}, 3072"); e(f"s_mov_b32 s{pS1}, s{pS0}")
    e(f"v_mov_b32 v{vA3}, v{vDg}")
    g.label("L_prep3")
    e(f"s_mul_i32 s{pA}, s{pU}, 9363"); e(f"s_lshr_b32 s{pA}, s{pA}, 22")
    e(f"s_mul_i32 s{pB}, s{pA}, 448"); e(f"s_sub_u32 s{pB}, s{pU}, s{pB}"); e(f"s_lshr_b32 s{pB}, s{pB}, 4")
    e(f"s_and_b32 s{sP}, s{pU}, 15")
    e(f"s_mul_i32 s{pD2}, s{sP}, {3*SL}"); e(f"s_add_u32 s{pD2}, s{pD2}, {W1F}")
    e(f"s_mul_i32 s{sP}, s{sP}, 56")
    e(f"s_add_u32 s{pS3}, s{pU}, 128"); e(f"s_lshr_b32 s{pS3}, s{pS3}, 4")
    e(f"s_lshl_b32 s{pD3}, s{pS3}, 10"); e(f"s_add_u32 s{pD3}, s{pD3}, s{pD2}"); e(f"s_add_u32 s{pD3}, s{pD3}, {2*SL}")
    e(f"s_cmp_ge_u32 s{pU}, 320"); e(f"s_cselect_b32 s{pD3}, {BIG}, s{pD3}")
    e(f"s_mul_i32 s{pS3}, s{pS3}, {16*2688}"); e(f"s_add_u32 s{pS3}, s{pS3}, s{sP}")
    e(f"s_mul_i32 s{sC}, s{pA}, {SL}"); e(f"s_add_u32 s{pD2}, s{pD2}, s{sC}"); e(f"s_lshl_b32 s{sC}, s{pB}, 10"); e(f"s_add_u32 s{pD2}, s{pD2}, s{sC}")
    e(f"s_add_u32 s{pA}, s{pA}, 1"); e(f"s_mul_i32 s{sC}, s{pA}, 896")
    e(f"s_cmp_eq_u32 s{pA}, 3"); e(f"s_cselect_b32 s{sC}, 0, s{sC}")
    e(f"s_mul_i32 s{pS2}, s{pB}, {16*2688}"); e(f"s_add_u32 s{pS2}, s{pS2}, s{sP}"); e(f"s_add_u32 s{pS2}, s{pS2}, s{sC}")
    e("s_waitcnt lgkmcnt(0)")
    def mk(d, src, size):
        e(f"s_mov_b32 s{d}, s{src}"); e(f"s_mov_b32 s{d+1}, s{src+1}")
        e(f"s_mov_b32 s{d+2}, {size}"); e(f"s_mov_b32 s{d+3}, 0x20000")
    mk(dWQ, 86, 448*1344*2)
    g.vm(f"buffer_load_dwordx4 {vr(B1+8,4)}, v{vDq}, {srd(dWQ)}, s{pS2} offen")
    mk(dWS, 82, WS_SIZE)
    e(f"v_mov_b32 v{vT[3]}, {EPOCH}")
    g.vm(f"buffer_load_dwordx4 {vr(B1+12,4)}, v{vDq}, {srd(dWQ)}, s{pS3} offen")
    g.vm(f"buffer_load_dword v{vPoll}, v{vT[3]}, {srd(dWS)}, 0 offen sc1", "prep1")
    mk(dX0, 84, 2048*896)
    g.prefetch(dX0, 0, 1792, vT[2], sT[0], sbase=sFc)
    e(f"s_cmp_ge_u32 s2, 196")
    e(f"s_cselect_b32 s{dMX}, s92, s96"); e(f"s_cselect_b32 s{dMX+1}, s93, s97")
    e(f"s_cselect_b32 s{dWD}, s94, s96"); e(f"s_cselect_b32 s{dWD+1}, s95, s97")
    e(f"s_mov_b32 s{dMX+2}, {448*1792*2}"); e(f"s_mov_b32 s{dMX+3}, 0x20000")
    e(f"s_mov_b32 s{dWD+2}, {448*1792*2}"); e(f"s_mov_b32 s{dWD+3}, 0x20000")
    def prep_dma():
        e(f"s_mov_b32 m0, s{sMv}")
        g.vm(f"buffer_load_dwordx4 v{vA3}, {srd(dMX)}, s{pS0} offen lds")
        e(f"s_add_u32 m0, s{sMv}, 1024")
        g.vm(f"buffer_load_dwordx4 v{vA3}, {srd(dWD)}, s{pS1} offen lds", "prep")
    def x0load(cb):
        for rb in range(4):
            e(f"s_add_u32 m0, s{sLv}, {rb*SL + cb*896}")
            g.vm(f"buffer_load_dwordx4 v{B0 + (rb & 1)}, {srd(dX0)}, s{xb[rb]} offen offset:{128*cb} lds", f"x0_{cb}")
    if opt.tlb:
        for src in (92, 94, 88, 96):
            g.vm(f"global_load_dword {R(JUNK,1)}, v{vT[3]}, s[{src}:{src+1}]")
    for i in range(opt.x0n): x0load(i)
    mk(dWG, 92, 448*1792*2)
    mk(dWU, 94, 448*1792*2)
    e(f"s_mul_i32 s{sP}, s{sJ}, 9363"); e(f"s_lshr_b32 s{sP}, s{sP}, 16")
    e(f"s_mul_i32 s{sC}, s{sP}, 7"); e(f"s_sub_u32 s{sC}, s{sJ}, s{sC}")
    e(f"s_cmp_ge_u32 s{sJ}, 28")
    e(f"s_cselect_b32 s{sP}, s{sC}, s{sP}")
    e(f"s_cselect_b32 s{sC}, 0, s{sC}")
    e(f"s_cselect_b32 s{dWSB+2}, 0, {WS_SIZE}")
    e(f"s_cselect_b32 s{dOUT+2}, 0, {2048*896}")
    e(f"s_mov_b32 s{dWSB}, s{dWS}"); e(f"s_mov_b32 s{dWSB+1}, s{dWS+1}"); e(f"s_mov_b32 s{dWSB+3}, 0x20000")
    e(f"s_mov_b32 s{dOUT}, s98"); e(f"s_mov_b32 s{dOUT+1}, s99"); e(f"s_mov_b32 s{dOUT+3}, 0x20000")
    mk(dWO, 88, 448*896)
    def warm_mall():
        e(f"v_lshlrev_b32 v{vT[3]}, 3, v{vL16}"); e(f"v_min_u32 v{vT[3]}, {12*128}, v{vT[3]}")
        e(f"s_mul_i32 s{sT[0]}, s{pU}, {13*128}")
        g.vm(f"buffer_load_dword {R(JUNK,1)}, v{vT[3]}, {srd(dWG)}, s{sT[0]} offen")
        g.vm(f"buffer_load_dword {R(JUNK,1)}, v{vT[3]}, {srd(dWU)}, s{sT[0]} offen")
        e(f"v_min_u32 v{vT[3]}, {3*128}, v{vT[3]}"); e(f"s_lshl_b32 s{sT[0]}, s{pU}, 9")
        g.vm(f"buffer_load_dword {R(JUNK,1)}, v{vT[3]}, {srd(dWO)}, s{sT[0]} offen")
    if opt.htouch == 3:
        e(f"s_mul_i32 s{sT[1]}, s{sX}, {32*SL}")
        g.prefetch(dWS, HBUF, 7168, vT[2], sT[0], sbase=sT[1])
    e(f"s_lshl_b32 s{sT[0]}, s{sX}, 2"); e(f"s_add_u32 s{sP}, s{sP}, s{sT[0]}")
    e(f"s_lshr_b32 s{sT[0]}, s{sV}, 1"); e(f"s_lshl_b32 s{sTBO}, s{sP}, 1"); e(f"s_add_u32 s{sTBO}, s{sTBO}, s{sT[0]}")
    e(f"s_and_b32 s{sT[1]}, s{sV}, 1"); e(f"s_lshl_b32 s{sCTO}, s{sC}, 1"); e(f"s_add_u32 s{sCTO}, s{sCTO}, s{sT[1]}")
    e(f"v_and_b32 v{vT[0]}, 31, v0")
    e(f"v_lshrrev_b32 v{vT[1]}, 5, v0")
    e(f"v_mul_u32_u24 v{vRow}, 896, v{vT[0]}")
    e(f"v_lshl_add_u32 v{vRow}, v{vT[1]}, 4, v{vRow}")
    e(f"s_mul_i32 s{sT[2]}, s{sTBO}, {32*896}"); e(f"s_lshl_b32 s{sT[3]}, s{sCTO}, 6"); e(f"s_add_u32 s{sT[2]}, s{sT[2]}, s{sT[3]}")
    e(f"v_add_u32 v{vRow}, s{sT[2]}, v{vRow}")
    e(f"v_lshlrev_b32 v{vStW}, 4, v{vT[0]}")
    e(f"v_lshl_add_u32 v{vStW}, v{vT[1]}, 2, v{vStW}")
    e(f"v_add_u32 v{vLA}, {SA}, v{vL16}")
    e(f"v_and_b32 v{vP8}, 7, v0"); e(f"v_lshlrev_b32 v{vP8}, 2, v{vP8}")
    e(f"v_min_u32 v{vPx}, 13, v{vT[0]}"); e(f"v_lshlrev_b32 v{vPx}, 2, v{vPx}")
    e(f"v_cmp_eq_u32 vcc, 0, v0")
    e(f"v_bfrev_b32 v{vL0}, 1")
    e(f"v_cndmask_b32 v{vL0}, v{vL0}, 0, vcc")
    e(f"v_bfe_u32 v{vT[2]}, v0, 2, 2")
    e(f"v_lshl_add_u32 v{vT[2]}, v{vT[1]}, 3, v{vT[2]}")
    e(f"v_and_b32 v{vT[3]}, 1, v0"); e(f"v_lshlrev_b32 v{vT[3]}, 4, v{vT[3]}")
    e(f"v_bfe_u32 v{vT[4]}, v0, 1, 1"); e(f"v_lshl_add_u32 v{vT[3]}, v{vT[4]}, 3, v{vT[3]}")
    e(f"v_bfe_u32 v{vT[4]}, v0, 4, 1")
    e(f"v_lshl_add_u32 v{vT[5]}, v{vT[2]}, 6, v{vT[3]}")
    e(f"v_lshl_add_u32 v{vTr}, v{vT[4]}, 5, v{vT[5]}")
    e(f"v_lshl_add_u32 v{vT[5]}, v{vT[4]}, 10, v{vT[5]}")
    e(f"v_add_u32 v{vTrA}, {SA}, v{vTr}")
    e(f"s_getreg_b32 s{sXCC}, hwreg(HW_REG_XCC_ID)")
    e(f"s_and_b32 s{sXCC}, s{sXCC}, 7")
    e(f"s_lshr_b32 s{sT[2]}, s{sTB}, 1"); e(f"s_lshl_b32 s{sFl}, s{sT[2]}, 7")
    e(f"s_lshl_b32 s{sT[2]}, s{sHS}, 3"); e(f"s_add_u32 s{sFl}, s{sFl}, s{sT[2]}")
    e(f"s_lshl_b32 s{sT[2]}, s{sT[1]}, 2"); e(f"s_add_u32 s{sFl}, s{sFl}, s{sT[2]}"); e(f"s_add_u32 s{sFl}, s{sFl}, {OF}")
    e(f"s_lshl_b32 s{sFc}, s{sP}, 7"); e(f"s_lshl_b32 s{sT[2]}, s{sV}, 5"); e(f"s_add_u32 s{sFc}, s{sFc}, s{sT[2]}")
    e(f"s_mul_i32 s{sT[0]}, s{sV}, {112*3584}"); e(f"s_lshl_b32 s{sT[2]}, s{sJ}, 5"); e(f"s_add_u32 s{sT[0]}, s{sT[0]}, s{sT[2]}")
    e(f"s_add_u32 s{sT[0]}, s{sT[0]}, 2048")
    e(f"v_and_b32 v{vT[2]}, 0xffffffdf, v{vDg}"); e(f"v_add_u32 v{vT[2]}, s{sT[0]}, v{vT[2]}")
    e(f"v_and_b32 v{vT[3]}, 2, v0"); e(f"v_cmp_ne_u32 vcc, 0, v{vT[3]}")
    e(f"v_mov_b32 v{vMX}, s{dWG}"); e(f"v_mov_b32 v{vT[3]}, s{dWU}"); e(f"v_cndmask_b32 v{vMX}, v{vMX}, v{vT[3]}, vcc")
    e(f"v_mov_b32 v{vMX+1}, s{dWG+1}"); e(f"v_mov_b32 v{vT[3]}, s{dWU+1}"); e(f"v_cndmask_b32 v{vMX+1}, v{vMX+1}, v{vT[3]}, vcc")
    e(f"v_add_co_u32 v{vMX}, vcc, v{vMX}, v{vT[2]}"); e(f"v_addc_co_u32 v{vMX+1}, vcc, 0, v{vMX+1}, vcc")
    e(f"s_mov_b32 s{sWM}, {16*3584}"); e(f"s_mov_b32 s{sWM+1}, 0")
    e(f"s_and_b32 s{sT[1]}, s{sJ}, 1"); e(f"s_xor_b32 s{sT[1]}, s{sT[1]}, 1"); e(f"s_lshl_b32 s{sT[1]}, s{sT[1]}, 2")
    e(f"s_lshl_b32 s{sTB3}, s{sX}, 3"); e(f"s_add_u32 s{sTB3}, s{sTB3}, s{sT[1]}"); e(f"s_add_u32 s{sTB3}, s{sTB3}, s{sV}")
    for i in range(12): e(f"v_accvgpr_write_b32 a{224+i}, 0")
    e(f"v_mov_b32 v{vT[2]}, 0x3f803f80")
    for i in range(4): e(f"v_accvgpr_write_b32 {R(ONES+i,1)}, v{vT[2]}")
    e(f"v_bfe_u32 v{vT[3]}, v0, 1, 3"); e(f"v_xor_b32 v{vT[3]}, v{vT[3]}, v{vT[1]}")
    e(f"v_and_b32 v{B0+2}, 7, v0"); e(f"v_lshlrev_b32 v{B0+2}, 7, v{B0+2}"); e(f"v_lshl_add_u32 v{B0+2}, v{vT[3]}, 4, v{B0+2}")
    e(f"v_bfe_u32 v{vT[3]}, v0, 3, 2"); e(f"v_mul_u32_u24 v{vT[3]}, {SL}, v{vT[3]}")
    e(f"v_add3_u32 v{B0+2}, v{B0+2}, v{vT[3]}, s{sLv}")
    for q in range(1, 4): e(f"v_xor_b32 v{B0+2+q}, {32*q}, v{B0+2}")
    sums = [B2 + 4, B2 + 5, B2 + 6, B2 + 7]
    for r in sums: e(f"v_mov_b32 v{r}, 0")
    e(f"v_add_u32 v{vT[0]}, s{sMv}, v{vTr}")
    e(f"v_add_u32 v{vT[5]}, s{sMv}, v{vT[5]}")
    e(f"s_cmp_ge_u32 s2, 196")
    e(f"s_cselect_b64 vcc, -1, 0")
    e(f"s_cselect_b32 s{sT[0]}, 32, 1024")
    e(f"v_cndmask_b32 v{vT[5]}, v{vT[0]}, v{vT[5]}, vcc")
    e(f"v_add_u32 v{vT[4]}, s{sT[0]}, v{vT[5]}")
    e(f"s_mov_b32 s{sPS}, s{pD0}"); e(f"s_mov_b32 s{sH1}, s{pD1}"); e(f"s_mov_b32 s{sH2}, s{pD2}"); e(f"s_mov_b32 s{sPS2}, s{pD3}")
    e(f"s_mov_b32 s{sHALF}, 0"); e(f"s_mov_b32 s{sHALF+1}, -1")
    e(f"s_mov_b32 s{sONES}, 0x10000000"); e(f"s_mov_b32 s{sONES+1}, 0x10000000")
    if opt.stamps:
        e("v_mov_b32 v0, 0"); e("v_writelane_b32 v0, s100, 0"); g.nstamp = 1; g.names.append("entry")
    g.stamp("setup done")
    def w1_out():
        e(f"s_mov_b32 s{sT[2]}, 0x88888888"); e(f"s_mov_b32 s{sT[3]}, 0x88888888")
        g.wait(vm="prep1")
        e(f"v_readfirstlane_b32 s{sTAG}, v{vPoll}")
        e(f"v_add_u32 v{vDq}, 1, v{vPoll}")
        e(f"v_and_b32 v{vDq}, 0xbfffbfff, v{vDq}")
        e(f"v_cndmask_b32 v{B1+11}, v{B1+11}, v{vDq}, {sr(sT[2],2)}")
        e(f"v_cndmask_b32 v{B1+15}, v{B1+15}, v{vDq}, {sr(sT[2],2)}")
        e(f"s_add_u32 s{sTAG}, s{sTAG}, 1")
        g.vm(f"buffer_store_dwordx4 {vr(B1+8,4)}, v{vL16}, {srd(dWS)}, s{sH2} offen sc1")
        g.vm(f"buffer_store_dwordx4 {vr(B1+12,4)}, v{vL16}, {srd(dWS)}, s{sPS2} offen sc1")
        if opt.fine: g.stamp("w1 stored")
    def stats(cb):
        for q in range(4):
            g.wait(lg=f"xs{4*cb+q}")
            for k in range(4):
                r = X + 16*cb + 4*q + k
                e(f"v_dot2c_f32_bf16 v{sums[(k&1)*2]}, v{r}, v{vT[2]}")
                e(f"v_dot2c_f32_bf16 v{sums[(k&1)*2+1]}, v{r}, v{r}")
    w1_out()
    if opt.wpos == 2: warm_mall()
    for cb in range(opt.x0n, 7): x0load(cb)
    if opt.wpos == 1: warm_mall()
    e(f"s_sub_u32 s{sE}, s{sTAG}, 1"); e(f"s_mov_b32 s{sTO}, 0")
    for cb in range(7):
        if cb == opt.vat: g.dma_tile(dWS, vL16, sW1, W1F + SL, 1024, sLv, RB, "dV", flags="sc1")
        g.wait(vm=f"x0_{cb}")
        if cb == 0 or (opt.fine and cb in (3, 6)): g.stamp(f"x0 {cb}")
        for q in range(4):
            g.ds(f"ds_read_b128 {vr(X+16*cb+4*q,4)}, v{B0+2+q} offset:{cb*1024}", f"xs{4*cb+q}")
        if cb >= 1 and cb < 6: stats(cb - 1)
    g.wait(lg="all")
    g.dma_tile(dWS, vL16, sW1, W1F, 1024, sLv, SA, "dK", flags="sc1")
    stats(5); stats(6)
    e(f"v_add_f32 v{B2}, v{sums[0]}, v{sums[2]}")
    e(f"v_add_f32 v{B2+1}, v{sums[1]}, v{sums[3]}")
    g.stamp("staged")
    if opt.warm and opt.wpos == 0: warm_mall()
    prep_dma()
    for i in range(1, 8): e(f"s_movk_i32 s{sK[i]}, {4096*i}")
    e(f"s_mul_i32 s{sW2}, s{sV}, {112*896}"); e(f"s_lshl_b32 s{sT[2]}, s{sC}, 7"); e(f"s_add_u32 s{sW2}, s{sW2}, s{sT[2]}")
    if opt.pfw2: g.prefetch(dWO, 0, 3136, vA2, sT[3])
    if opt.tmode == 1 and not opt.noT:
        g.dma_tile(dWG, vDg, sW3, 0, 16*3584, sLv, T0, "dT", mode="bg", flags="nt" if opt.nt & 1 else "")
        g.dma_tile(dWU, vDg, sW3, 0, 16*3584, sLv, T1, "dT1", mode="bg", flags="nt" if opt.nt & 1 else "")
        for i in range(7):
            pre = [f"s_add_u32 m0, s{sLv}, {T2 + i*1024}"]
            pre.append(f"v_lshl_add_u64 {vr(vMX,2)}, {vr(vMX,2)}, 0, {sr(sWM,2)}" if i else "s_nop 0")
            g.BG(pre, f"global_load_lds_dwordx4 {vr(vMX,2)}, off {'nt' if opt.nt & 1 else ''}", "dT2")
        for _ in range(opt.t0n): g.bg_step()
        g.bg_next = g.mf + opt.tdelay
    g.bg_period = opt.bg1
    e(f"s_mov_b32 s{sLN2}, {f32(LN2)}"); e(f"s_mov_b32 s{sBF1}, 0x3f803f80")
    e(f"v_bfe_u32 v{vA2}, v{vL16}, 6, 3"); e(f"v_mul_u32_u24 v{vDo}, 896, v{vA2}")
    e(f"v_and_b32 v{vA2}, 48, v{vL16}"); e(f"v_add_u32 v{vDo}, v{vDo}, v{vA2}")
    e(f"s_and_b32 s{sT[1]}, s{sV}, 1")
    e(f"v_xor_b32 v{vA2}, s{sT[1]}, v{vT[1]}"); e(f"v_lshl_add_u32 v{vDo}, v{vA2}, 6, v{vDo}")
    e(f"v_add_u32 v{vA0}, s{sLv}, v{vTrA}")
    w1_verify(g, "dV", SL, 1)
    if opt.fine: g.stamp("dV")
    cs_block(g, [(vA0, SL, 1024, 256, None)], [B0 + 16])
    w1_verify(g, "dK", 0, 0)
    if opt.fine: g.stamp("dK")
    cs_block(g, [(vA0, 0, 1024, 256, None)], [B0])
    cs_publish(g, [B0, B0 + 16], SMALL + 512, vA2)
    if opt.fine: g.stamp("cs done")
    g.barrier()
    g.stamp("B1")
    cs_final(g, [(CS + 1, 0), (CS + 3, 0)], SMALL + 512, B1 + 16, vA2, True)

def w1_verify(g, tag, off, tile):
    e = g.e
    Lc = g.newlabel("Lvc"); Lr = g.newlabel("Lvr"); D = g.newlabel("Lvd")
    e(f"v_lshlrev_b32 v{vA1}, 2, v{vL16}")
    e(f"v_add_u32 v{vA1}, s{sLv}, v{vA1}"); e(f"v_add_u32 v{vA1}, {SA + 60}, v{vA1}")
    g.wait(vm=tag)
    g.label(Lc)
    g.ds(f"ds_read_b32 v{vA2}, v{vA1} offset:{off}")
    g.ds(f"ds_read_b32 v{vA3}, v{vA1} offset:{off + 48*64}")
    g.wait(lg="all")
    e(f"v_xor_b32 v{vA2}, v{vA2}, v{vDq}")
    e(f"v_bitop3_b32 v{vA2}, v{vA2}, v{vA3}, v{vDq} bitop3:0xf6")
    e(f"v_cmp_ne_u32 vcc, 0, v{vA2}")
    e(f"s_cbranch_vccnz {Lr}")
    g.label(D)
    t = [f"{Lr}:", f"s_add_u32 s{sTO}, s{sTO}, 1", f"s_cmp_gt_u32 s{sTO}, 0x20000", f"s_cbranch_scc1 {D}"]
    for i in range(7):
        t += [f"s_add_u32 m0, s{sLv}, {SA + off + i*1024}", f"s_add_u32 s{sBG}, s{sW1}, {W1F + tile*SL + i*1024}",
              f"buffer_load_dwordx4 v{vL16}, {srd(dWS)}, s{sBG} offen sc1 lds"]
    g.tail += t + ["s_waitcnt vmcnt(0)", f"s_branch {Lc}"]

def prep_out(g):
    F = g.F
    g.Fwait(vm="prep", earliest=g.mf + opt.prepat)
    P = B1
    for k in range(4):
        va, off = [(vT[5], 0), (vT[4], 0)][k >> 1]
        g.Fds(f"ds_read_b64_tr_b16 {vr(P+2*k,2)}, v{va} offset:{off + (k&1)*256}", "pr")
    F(f"s_lshl_b32 s{sT[4]}, s{sX}, 7"); F(f"s_add_u32 s{sT[4]}, s{sT[4]}, {XINFO}")
    F(f"s_lshl_b32 s{sT[3]}, s{sJ}, 2"); F(f"s_add_u32 s{sT[3]}, s{sT[4]}, s{sT[3]}")
    g.Ffn(lambda: (g.e(f"s_cmp_lg_u32 s{sV}, 0"), g.e(f"s_cselect_b32 s{sT[3]}, {BIG}, s{sT[3]}")), 2)
    F(f"s_add_u32 s{sXCC}, s{sXCC}, s{sTAG}")
    F(f"v_mov_b32 v{vT[3]}, s{sXCC}")
    g.Fvm(f"buffer_store_dword v{vT[3]}, v{vL0}, {srd(dWS)}, s{sT[3]} offen sc1")
    g.Fwait(lg="pr")
    for k, so in enumerate((sPS, sH1)):
        g.Fvm(f"buffer_store_dwordx4 {vr(B1+4*k,4)}, v{vL16}, {srd(dWS)}, s{so} offen sc1", "prepst")
    for i in range(7 if opt.tmode == 0 else 0):
        g.Ffn(lambda i=i: (g.e(f"s_add_u32 m0, s{sLv}, {T0 + i*1024}"), g.e(f"s_add_u32 s{sBG}, s{sW1}, {i*16*2688}"),
                           g.vm(f"buffer_load_dwordx4 v{vDq}, {srd(dWQ)}, s{sBG} offen lds", "dQ")), 3)
    g.Fvm(f"buffer_load_dwordx4 {vr(vRES,4)}, v{vRow}, {srd(dX0)}, 0 offen")
    g.Fvm(f"buffer_load_dwordx4 {vr(vRES+4,4)}, v{vRow}, {srd(dX0)}, 0 offen offset:32", "res0")
    def bulk():
        if not opt.notouch: touch(g)
        if not opt.noT:
            n = 24 if opt.pfmx else 16
            pf_rows(g, dWG, n, 28, 0, 448*n, vT[5], vT[4], sBG)
            pf_rows(g, dWU, n, 28, 0, 448*n, vT[5], vT[4], sBG)
    if opt.tmode == 0: g.Ffn(bulk, 3)

def htouch(g):
    g.e(f"s_mul_i32 s{sT[5]}, s{sX}, {32*SL}")
    g.prefetch(dWS, HBUF, 7168, vT[5], sBG, sbase=sT[5])

def touch(g):
    if opt.htouch == 2: htouch(g)
    g.e(f"s_lshl_b32 s{sT[5]}, s{sX}, 18")
    g.e(f"s_mul_i32 s{sBG}, s{sTB}, {4*SL}"); g.e(f"s_lshl_b32 s{sNEED}, s{sHS}, 11"); g.e(f"s_add_u32 s{sBG}, s{sBG}, s{sNEED}")
    g.e(f"s_add_u32 s{sBG}, s{sBG}, {obase(0)}")
    g.e(f"v_lshlrev_b32 v{vT[5]}, 3, v{vL16}"); g.e(f"v_min_u32 v{vT[5]}, {15*128}, v{vT[5]}")
    if not opt.osc & 1: g.vm(f"buffer_load_dword {R(JUNK,1)}, v{vT[5]}, {srd(dWS)}, s{sBG} offen")
    if not opt.osc & 2: g.prefetch(dWS, XBUF, 2048, vT[5], sBG, sbase=sT[5])

def stats_fill(g, phase, base, tag, xe, c1, sd, zero=True, earliest=0):
    F = g.F
    if tag:
        g.Fwait(vm=tag, earliest=earliest)
        for k in (12, 13, 0, 1, 4, 5, 8, 9): F(f"v_add_f32 v{base+k}, v{base+k}, v{base+k+2}")
        for k in (12, 13): F(f"v_cndmask_b32 v{base+k}, v{base+k}, 0, {sr(sHALF,2)}")
        for k in (0, 1, 8, 9): F(f"v_add_f32 v{base+k}, v{base+k}, v{base+k+4}")
        for k in (0, 1): F(f"v_add_f32 v{base+k}, v{base+k}, v{base+k+8}")
    a, b = base, base + 1
    if zero:
        for k in range(4):
            if vXE + k != xe: F(f"v_mov_b32 v{vXE+k}, 0")
    F(f"v_permlane32_swap_b32 v{a}, v{b}")
    F(f"v_add_f32 v{a}, v{a}, v{b}")
    F(f"v_mul_f32 v{a}, {f32(1.0/448)}, v{a}")
    F(f"v_mov_b32 v{b}, v{a}")
    F(f"v_permlane32_swap_b32 v{a}, v{b}")
    F(f"v_fma_f32 v{b}, -v{a}, v{a}, v{b}")
    F(f"v_cvt_pk_bf16_f32 v{a}, -v{a}, -v{a}")
    F(f"v_max_f32 v{b}, 0, v{b}")
    F(f"v_cndmask_b32 v{xe}, v{a}, 0, {sr(sHALF,2)}")
    F(f"v_cvt_pk_bf16_f32 v{b}, v{b}, v{b}")
    F(f"v_lshlrev_b32 v{b}, 16, v{b}")
    F(f"v_add_f32 v{b}, {f32(1e-5)}, v{b}")
    F(f"v_cvt_pk_bf16_f32 v{b}, v{b}, v{b}")
    F(f"v_lshlrev_b32 v{b}, 16, v{b}")
    F(f"v_sqrt_f32 v{b}, v{b}")
    F(f"v_cvt_pk_bf16_f32 v{b}, v{b}, v{b}")
    F(f"v_lshlrev_b32 v{sd}, 16, v{b}")
    F(f"v_rcp_f32 v{c1}, v{sd}")
    F(f"v_mul_f32 v{c1}, {f32(LOG2E if phase == 1 else -LOG2E)}, v{c1}")

def xload(g, j, va):
    so, im = g.soff(j * 1024)
    g.vm(f"buffer_load_dwordx4 {vr(X+4*j,4)}, v{va}, {srd(dWS)}, {so} offen offset:{im} sc1", f"x{j}")
def stload(g, i, va, base, tag):
    g._pend(tag, -1)
    g.vm(f"buffer_load_dwordx4 {vr(base+4*i,4)}, v{va}, {srd(dWS)}, s{sK[7]} offen offset:{1024*i} sc1", tag)

def load_x(g, inst, stb, two, after_poll=None, stbase=B2):
    e = g.e
    if two:
        e(f"s_andn2_b32 s{sT[0]}, s{stb}, 4"); e(f"s_lshl_b32 s{sT[0]}, s{sT[0]}, 7")
        e(f"v_and_b32 v{vA2}, 0x200, v{vL16}"); e(f"v_add_u32 v{vA2}, v{vA2}, v{vPx}")
    else:
        e(f"s_lshl_b32 s{sT[0]}, s{stb}, 7")
    e(f"s_add_u32 s{sT[0]}, s{sT[0]}, {XF}")
    e(f"s_lshl_b32 s{sT[2]}, s{stb}, 15"); e(f"s_add_u32 s{sT[2]}, s{sT[2]}, {XBUF + inst_off(inst)}")
    e(f"v_add_u32 v{vA0}, s{sT[2]}, v{vL16}")
    if two: e(f"v_xor_b32 v{vA1}, {4*XB}, v{vA0}")
    g.set_need(inst)
    g.poll_loop(vA2 if two else vPx, sT[0])
    g.stamp("x flags seen")
    n0 = opt.n0 if two else 12
    g._pend("st", 4)
    if two: g._pend("st2", 4)
    for j in range(n0): xload(g, j, vA0)
    if after_poll: after_poll()
    fx = lambda n: (lambda: xload(g, n, vA0))
    fs = lambda n: (lambda: stload(g, n, vA0, stbase, "st"))
    if two:
        return [fx(j) for j in range(n0, 14)] + [fs(i) for i in range(4)] + [fx(j) for j in range(14, 28)]
    order = [fx(12), fx(13)] + [fs(i) for i in range(4)] + [fx(j) for j in range(14, 28)]
    posts = {}
    for j, f in enumerate(order):
        jj = j if j < 2 else (2 + (j - 2) // 2 if j < 10 else j - 4)
        posts.setdefault(jj, []).append(f)
    return posts

_uid = [0]
def gemm_chain(g, segs):
    _uid[0] += 1; u = _uid[0]
    items = []
    nr = 0
    reads = []
    for sg in segs:
        tiles = sg["tiles"]; nt = len(tiles); posts = sg.get("posts") or {}
        for j in range(28):
            for t in range(nt):
                b = AF + 4 * (nr % 6)
                def rd(j=j, t=t, b=b, n=nr, tiles=tiles, gate=(sg.get("gate") if (j == 0 and t == 0) else None)):
                    if gate: gate()
                    va, vb, off, ks, sec = tiles[t]
                    if vb is None:
                        g.ds(f"ds_read_b128 {vr(b,4)}, v{va} offset:{off + j*ks}", f"a{u}_{n}")
                    else:
                        g.ds(f"ds_read_b64_tr_b16 {vr(b,2)}, v{va} offset:{off + j*ks}")
                        g.ds(f"ds_read_b64_tr_b16 {vr(b+2,2)}, v{vb} offset:{off + j*ks + sec}", f"a{u}_{n}")
                reads.append(rd)
                xr = X + 4*j
                c = 0 if j == 0 else None
                m = MF(sg["accs"][t], xr, b, c) if sg["xa"] else MF(sg["accs"][t], b, xr, c)
                pre = [sg["hook"]] if (j == 0 and t == 0 and sg.get("hook")) else []
                post = list(posts.get(j, [])) if t == nt - 1 else []
                post += posts.get(("m", j*nt + t), [])
                items.append([nr, m, pre, post, (f"{sg['xtag']}{j}" if sg.get("xtag") and t == 0 else None)])
                nr += 1
            if j == 25:
                for t in range(nt):
                    m = MF(sg["accs"][t], vXE, sg["css"][t]) if sg["xa"] else MF(sg["accs"][t], sg["css"][t], vXE)
                    items.append([None, m, [g.flush_until_mark] if t == 0 else [], list(posts.get("xe", [])) if t == nt - 1 else [], None])
    D = 4
    steps = []
    for n, m, pre, post, xt in items:
        if n is not None:
            if n % 2 == 0:
                pre = pre + [lambda n=n, xt=xt: g.wait(vm=xt, lg=f"a{u}_{min(n + 1, nr - 1)}")]
            elif xt is not None:
                pre = pre + [lambda xt=xt: g.wait(vm=xt)]
            if n + D < nr: post = [reads[n + D]] + post
        steps.append((pre, m, post))
    return reads[:D], steps

def phi_block(g, acc, scale_regs, scale_lane, tmp):
    e = g.e
    for k in range(0, 16, 2):
        if scale_regs is not None:
            e(f"v_pk_mul_f32 {vr(acc+k,2)}, {vr(acc+k,2)}, {vr(scale_regs+k,2)}")
        else:
            e(f"v_pk_mul_f32 {vr(acc+k,2)}, {vr(acc+k,2)}, {vr(scale_lane,2)} op_sel_hi:[1,0]")
    for k in range(16):
        e(f"v_exp_f32_e64 v{tmp+k}, v{acc+k} clamp")
        e(f"v_max_f32 v{acc+k}, {f32(1e-6*LOG2E)}, v{acc+k}")
    for k in range(16):
        e(f"v_fmac_f32 v{tmp+k}, s{sLN2}, v{acc+k}")
    for k in range(8):
        e(f"v_cvt_pk_bf16_f32 v{acc+k}, v{tmp+2*k}, v{tmp+2*k+1}")

def w1tile(ps, off): return (vTrA, vTrA, off, 1024, 256)

def phase1a(g, ps):
    e = g.e
    accK, accV, accKV = B0, B0 + 16, B1 + 16
    posts = None
    if ps > 0:
        posts = load_x(g, 2, sTB, False, after_poll=lambda: g.barrier())
    pre, steps = gemm_chain(g, [dict(tiles=[w1tile(ps, 0), w1tile(ps, SL)], accs=[accK, accV], xa=True, css=[CS + 0, CS + 2], xtag=('x' if ps > 0 else None), posts=posts)])
    for f in pre: f()
    stats_fill(g, 1, B2, "st" if ps > 0 else None, vXE + 1, vC1, vSD, earliest=g.mf + 30)
    g.F(f"v_lshrrev_b32 v{vA2}, 2, v{vL16}")
    g.F(f"v_and_b32 v{vA2}, 0x7c, v{vA2}")
    g.F(f"v_add_u32 v{vA2}, s{sMv}, v{vA2}")
    g.F(f"v_lshrrev_b32 v{vA3}, 5, v{vL16}")
    g.F(f"v_and_b32 v{vA3}, 16, v{vA3}")
    g.F(f"v_add_u32 v{vA3}, s{sMv}, v{vA3}")
    g.Fds(f"ds_write_b32 v{vA2}, v{vC1} offset:{SMALL}")
    for q in range(4):
        g.Fds(f"ds_read_b128 {vr(B2+4*q,4)}, v{vA3} offset:{SMALL+32*q}", "rs")
    g.mark()
    if ps == 0: prep_out(g)
    g.F(f"v_add_u32 v{vA2}, s{sMv}, v{vL16}")
    g.F(f"v_lshrrev_b32 v{vA3}, 3, v{vL16}"); g.F(f"v_and_b32 v{vA3}, 0x70, v{vA3}")
    g.F(f"v_bfe_u32 v{vT[2]}, v{vL16}, 5, 1"); g.F(f"v_lshl_add_u32 v{vA3}, v{vT[2]}, 9, v{vA3}")
    g.F(f"v_bfe_u32 v{vT[2]}, v{vL16}, 6, 1"); g.F(f"v_lshl_add_u32 v{vA3}, v{vT[2]}, 11, v{vA3}")
    g.F(f"v_bfe_u32 v{vT[2]}, v{vL16}, 4, 1"); g.F(f"v_lshl_add_u32 v{vA3}, v{vT[2]}, 10, v{vA3}")
    g.F(f"s_lshl_b32 s{sT[0]}, s{sV}, 7"); g.F(f"s_add_u32 s{sT[0]}, s{sT[0]}, {MISC}")
    g.F(f"v_add_u32 v{vA3}, s{sT[0]}, v{vA3}")
    g.F(f"v_mov_b32 v{vT[2]}, s{sBF1}")
    g.F(f"s_lshl_b32 s{sT[0]}, s{sHS}, 2"); g.F(f"s_add_u32 s{sT[0]}, s{sT[0]}, s{sV}")
    g.F(f"s_lshl_b32 s{sT[0]}, s{sT[0]}, 13"); g.F(f"s_add_u32 s{sT[0]}, s{sT[0]}, {PART[ps]}")
    g.F(f"s_lshl_b32 s{sT[1]}, s{sG}, 9"); g.F(f"s_add_u32 s{sT[1]}, s{sT[1]}, s{sT[0]}")
    g.F(f"v_mov_b32 v{vT[3]}, s{sTAG}")
    g.F(f"v_lshrrev_b32 v{vT[4]}, 1, v{vL16}")
    g.F(f"s_mov_b32 s{sT[2]}, 0x80808080"); g.F(f"s_mov_b32 s{sT[3]}, 0x80808080")
    g.bg_period = opt.bg1
    g.stream(steps)
    g.flush()
    g.wait(lg="all")
    g.stamp("kv gemm done")
    e(f"v_add_u32 v{vA0}, s{sT[0]}, v{vL16}")
    g.bg_step()
    phi_block(g, accK, B2, None, B1)
    g.bg_step()
    for k in range(0, 16, 2):
        e(f"v_pk_mul_f32 {vr(accV+k,2)}, {vr(accV+k,2)}, {vr(B2+k,2)}")
    for k in range(8):
        e(f"v_cvt_pk_bf16_f32 v{accV+k}, v{accV+2*k}, v{accV+2*k+1}")
    for k in range(8):
        e(f"v_cndmask_b32 v{accV+k}, v{accV+k}, v{vT[2]}, {sr(sONES,2)}")
    e(MF(accKV, accK, accV, 0))
    e(MF(accKV, accK + 4, accV + 4))
    for q in range(4):
        g.ds(f"ds_write_b128 v{vA2}, {vr(accKV+4*q,4)} offset:{1024*q}")
    g.barrier(vm="prepst" if ps == 0 else None)
    for w in range(4):
        g.ds(f"ds_read_b128 {vr(B0+16+4*w,4)}, v{vA3} offset:{w*MB}", f"kp{w}")
    r = B0 + 16
    g.wait(lg="kp1")
    e(f"v_pk_add_f32 {vr(r,2)}, {vr(r,2)}, {vr(r+4,2)}"); e(f"v_pk_add_f32 {vr(r+2,2)}, {vr(r+2,2)}, {vr(r+6,2)}")
    g.wait(lg="kp3")
    e(f"v_pk_add_f32 {vr(r+8,2)}, {vr(r+8,2)}, {vr(r+12,2)}"); e(f"v_pk_add_f32 {vr(r+10,2)}, {vr(r+10,2)}, {vr(r+14,2)}")
    e(f"v_pk_add_f32 {vr(r,2)}, {vr(r,2)}, {vr(r+8,2)}"); e(f"v_pk_add_f32 {vr(r+2,2)}, {vr(r+2,2)}, {vr(r+10,2)}")
    e(f"v_cvt_pk_bf16_f32 v{r}, v{r}, v{r+1}")
    e(f"v_cvt_pk_bf16_f32 v{r+1}, v{r+2}, v{r+3}")
    e(f"v_cndmask_b32 v{r+1}, v{r+1}, v{vT[3]}, {sr(sT[2],2)}")
    g.vm(f"buffer_store_dwordx2 {vr(r,2)}, v{vT[4]}, {srd(dWS)}, s{sT[1]} offen sc1")
    g.stamp("partial stored")

def w2reg(n): return B0 + 4*n if n < 8 else X + 64 + 4*(n - 8)

def w2_reads(g, rnd, fill, base):
    D = g.Fds if fill else g.ds
    for n in range(8):
        ks, a = n >> 1, n & 1
        hl, f = ks >> 1, ks & 1
        b = w2reg(8*rnd + n)
        g0 = 7*hl + 4*f
        def off(gm): return base + (gm >> 1) * 1024 + (gm & 1) * 256 + a * 512
        D(f"ds_read_b64_tr_b16 {vr(b,2)}, v{vA2} offset:{off(g0)}")
        if f == 0: D(f"ds_read_b64_tr_b16 {vr(b+2,2)}, v{vA2} offset:{off(g0+1)}", "w2")
        else: D(f"ds_read_b64_tr_b16 {vr(b+2,2)}, v{vA3} offset:{off(g0+1)}", "w2")

def gather_text(g, i):
    so, im = g.soff(i * 1024)
    return f"buffer_load_dwordx4 {vr(GR+4*i,4)}, v{vA0}, {srd(dWS)}, {so} offen offset:{im} sc1"

def phase1b(g, ps):
    e = g.e
    accQ = B1
    if ps == 0:
        while g.pending.get("dT1"): g.bg_step()
        g.dma_tile(dWS, vL16, sW1, W1F + 2*SL, 1024, sLv, SA, "dQ", flags="sc1")
        e(f"v_add_u32 v{vT[0]}, s{sLv}, v{vTr}")
        e(f"v_add_u32 v{vT[1]}, s{sLv}, v{vL16}")
        g.bg_period = opt.bg2; g.bg_next = 0
        cs_block(g, [(vT[0], T0, 1024, 256, "dT"), (vT[0], T1, 1024, 256, "dT1")], [B0, B0 + 16], wb=vT[1])
        w1_verify(g, "dQ", 0, 2)
        e(f"v_lshrrev_b32 v{vA1}, 2, v{vL16}"); e(f"v_and_b32 v{vA1}, 0x7c, v{vA1}")
        e(f"v_add_u32 v{vA2}, s{sLv}, v{vTrA}")
        cs_block(g, [(vA2, 0, 1024, 256, None)], [B2])
        cs_publish(g, [B2], SMALL + 512, vT[3])
    else:
        g.dma_tile(dWS, vL16, sW1, W1F + 2*SL, 1024, sLv, SA, "dQ", flags="sc1")
        g.dma_tile(dWO, vDo, sW2, 0, 8*896, sLv, RB, "dO0")
        g.prefetch(dWS, MXF, 3584, vT[5], sT[0], flags="sc1")
    e(f"v_and_b32 v{vA3}, 0x1ff, v{vTr}")
    e(f"s_add_u32 s{sT[0]}, s{sLv}, {SA}")
    e(f"v_add_u32 v{vA3}, s{sT[0]}, v{vA3}")
    e(f"v_and_b32 v{vA2}, 0x200, v{vTr}")
    e(f"v_lshl_add_u32 v{vA2}, v{vA2}, 1, v{vA3}")
    g.barrier(vm="dQ")
    g.stamp("B2q")
    gat = opt.gat0 if ps == 0 else opt.gat
    posts = {gat + i: [lambda i=i: g.vm(gather_text(g, i), f"pt{i}")] for i in range(8)}
    g.bg_period = 3
    if ps == 0: posts[gat - 1] = [g.bg_flush, lambda: g.poll_issue(vA1, sT[4], "xi")]
    qt = (vTr, vTr, T0, 1024, 256) if (ps == 0 and opt.tmode == 0) else w1tile(ps, 0)
    pre, steps = gemm_chain(g, [dict(tiles=[qt], accs=[accQ], xa=False, css=[CS + 4], posts=posts)])
    for f in pre: f()
    if ps == 0: cs_final(g, [(CS + 5, 0)], SMALL + 512, B0 + 4, vT[3], True)
    g.mark()
    if ps > 0:
        g.Fwait(vm="dO0", earliest=g.mf + 8)
        w2_reads(g, 0, True, SL)
        g.Fwait(lg="w2")
    g.stream(steps)
    g.flush()
    g.stamp("q gemm done")
    phi_block(g, accQ, None, vC1, X + 16)
    e(f"v_cndmask_b32 v{accQ+6}, v{accQ+6}, 0, {sr(sHALF,2)}")
    e(f"v_cndmask_b32 v{accQ+7}, v{accQ+7}, 0, {sr(sHALF,2)}")
    if ps == 0 and opt.tmode == 0: g.dma_tile(dWO, vDo, sW2, 0, 8*896, sLv, SA, "dO0")
    g.dma_tile(dWO, vDo, sW2, 56*896, 8*896, sLv, RB, "dO1")
    if ps == 0:
        cs_block(g, [(vT[0], T2, 1024, 256, "dT2")], [X + 96], wb=vT[1])
        e(f"v_add_u32 v{vLT2}, {T2}, v{vL16}")
        cs_publish(g, [B0, B0 + 16, X + 96], 0, vT[3])
        g.wait(lg="all")

def placement_check(g):
    e = g.e
    L = g.newlabel("Lxi"); D = g.newlabel("Lxid")
    g.set_need(1)
    g.wait(vm="xi")
    e(f"v_subrev_u32 v{vT[2]}, s{sNEED}, v{vPoll}")
    e(f"v_cmp_le_u32 vcc, 8, v{vT[2]}")
    e(f"s_cbranch_vccz {D}")
    g.label(L)
    e(f"buffer_load_dword v{vPoll}, v{vA1}, {srd(dWS)}, s{sT[4]} offen sc1")
    e(f"s_add_u32 s{sTO}, s{sTO}, 1"); e(f"s_cmp_gt_u32 s{sTO}, 0x20000"); e(f"s_cbranch_scc1 {D}")
    e("s_waitcnt vmcnt(0)")
    e(f"v_subrev_u32 v{vT[2]}, s{sNEED}, v{vPoll}")
    e(f"v_cmp_le_u32 vcc, 8, v{vT[2]}")
    e(f"s_cbranch_vccnz {L}")
    g.label(D)
    e(f"v_cmp_ne_u32 vcc, s{sXCC}, v{vPoll}")
    if opt.force_slow: e("s_branch L_slow")
    else: e("s_cbranch_vccnz L_slow")

def phase1c(g, ps):
    e = g.e
    accQ, accO = B1, B1 + 16
    osc = "sc1" if (ps == 0 and opt.osc & 1) else g.sc
    Lc = g.newlabel("Lchk"); Lr = g.newlabel("Lre"); D = g.newlabel("Lgd")
    e(f"v_and_b32 v{vT[0]}, 0x1f0, v{vL16}"); e(f"v_lshrrev_b32 v{vT[1]}, 6, v{vL16}"); e(f"v_and_b32 v{vT[1]}, 8, v{vT[1]}")
    e(f"v_add3_u32 v{vT[0]}, v{vT[0]}, v{vT[1]}, s{sMv}")
    e(f"v_lshlrev_b32 v{vT[1]}, 1, v{vT[1]}")
    e(f"v_bfe_u32 v{vT[2]}, v{vL16}, 4, 3"); e(f"v_lshl_add_u32 v{vT[1]}, v{vT[2]}, 6, v{vT[1]}")
    e(f"v_bfe_u32 v{vT[2]}, v{vL16}, 7, 2"); e(f"v_mul_u32_u24 v{vT[2]}, {MB}, v{vT[2]}")
    e(f"v_add_u32 v{vT[2]}, {MISC+SMALL}, v{vT[2]}"); e(f"v_add_u32 v{vT[1]}, v{vT[1]}, v{vT[2]}")
    e(f"s_mul_i32 s{sT[0]}, s{sTB}, {4*SL}"); e(f"s_lshl_b32 s{sT[1]}, s{sHS}, 11"); e(f"s_add_u32 s{sT[0]}, s{sT[0]}, s{sT[1]}")
    e(f"s_add_u32 s{sT[0]}, s{sT[0]}, {obase(ps)}")
    e(f"s_mov_b32 s{sT[1]}, {f32(LOG2E)}")
    e(f"v_mov_b32 v{vT[4]}, {f32(1e-6*LOG2E)}")
    e(f"v_mov_b32 v{vT[3]}, s{sTAG}")
    e(f"s_mov_b32 s{sT[2]}, 0x88888888"); e(f"s_mov_b32 s{sT[3]}, 0x88888888")
    e(f"s_movk_i32 s{sT[4]}, 0x3f80"); e(f"s_mov_b32 s{sT[5]}, 0x3f800000")
    g.label(Lc)
    for i in range(8):
        r = GR + 4*i
        g.wait(vm=f"pt{i}")
        if i == 0:
            e(f"v_xor_b32 v{vT[2]}, v{r+3}, v{vT[3]}")
            for k in range(4):
                e(f"v_lshlrev_b32 v{X+2*k}, 16, v{r+k}"); e(f"v_and_b32 v{X+2*k+1}, 0xffff0000, v{r+k}")
        else:
            e(f"v_bitop3_b32 v{vT[2]}, v{vT[2]}, v{r+3}, v{vT[3]} bitop3:0xf6")
            for k in range(4):
                e(f"v_dot2c_f32_bf16 v{X+2*k}, s{sT[4]}, v{r+k}"); e(f"v_dot2c_f32_bf16 v{X+2*k+1}, s{sT[5]}, v{r+k}")
    e(f"v_cmp_ne_u32 vcc, 0, v{vT[2]}")
    e(f"s_and_b64 vcc, vcc, {sr(sT[2],2)}")
    e(f"s_cbranch_scc1 {Lr}")
    g.label(D)
    g.tail += [f"{Lr}:", f"s_add_u32 s{sTO}, s{sTO}, 1", f"s_cmp_gt_u32 s{sTO}, 0x20000", f"s_cbranch_scc1 {D}"] \
            + [gather_text(g, i) for i in range(8)] + ["s_waitcnt vmcnt(0)", f"s_branch {Lc}"]
    g.stamp("gathered")
    e(f"s_mov_b32 s{sT[2]}, 0")
    for k in range(4): e(f"v_permlane32_swap_b32 v{X+k}, v{X+4+k}")
    e(f"v_pk_add_f32 {vr(X,2)}, {vr(X,2)}, {vr(X+4,2)}"); e(f"v_pk_add_f32 {vr(X+2,2)}, {vr(X+2,2)}, {vr(X+6,2)}")
    e(f"v_cvt_pk_bf16_f32 v{X}, v{X}, v{X+1}")
    e(f"v_cvt_pk_bf16_f32 v{X+1}, v{X+2}, v{X+3}")
    e(f"v_cndmask_b32 v{X+1}, v{X+1}, 0, {sr(sT[2],2)}")
    g.ds(f"ds_write_b64 v{vT[0]}, {vr(X,2)} offset:{SMALL}")
    g.barrier()
    if ps == 0 and opt.tmode == 1: g.dma_tile(dWO, vDo, sW2, 0, 8*896, sLv, SA, "dO0")
    g.ds(f"ds_read_b128 {vr(AF,4)}, v{vT[1]}", "kx0")
    g.ds(f"ds_read_b128 {vr(AF+4,4)}, v{vT[1]} offset:32", "kx1")
    g.wait(lg="kx0")
    e(MF(accO, AF, accQ, 0))
    g.wait(lg="kx1")
    e(MF(accO, AF + 4, accQ + 4))
    e(f"v_mov_b32 v{vT[2]}, v{accO+12}")
    e(f"v_mov_b32 v{vT[3]}, v{accO+12}")
    e(f"v_permlane32_swap_b32 v{vT[3]}, v{vT[2]}")
    e(f"v_fma_f32 v{vT[2]}, v{vT[2]}, s{sT[1]}, v{vT[4]}")
    e(f"v_rcp_f32 v{vT[2]}, v{vT[2]}")
    e(f"v_cndmask_b32 v{vT[4]}, v{vT[2]}, 0, {sr(sHALF,2)}")
    for k in range(0, 16, 2):
        m = vT[2] if k < 12 else vT[4]
        e(f"v_pk_mul_f32 {vr(accO+k,2)}, {vr(accO+k,2)}, {vr(m,2)} op_sel_hi:[1,0]")
    for k in range(8):
        e(f"v_cvt_pk_bf16_f32 v{accO+k}, v{accO+2*k}, v{accO+2*k+1}")
        if k == 3: g.vm(f"buffer_store_dwordx4 {vr(accO,4)}, v{vL16}, {srd(dWS)}, s{sT[0]} offen {osc}")
    g.vm(f"buffer_store_dwordx4 {vr(accO+4,4)}, v{vL16}, {srd(dWS)}, s{sT[0]} offen offset:1024 {osc}", "ost")
    unpack_res(g)
    g.wait(vm="dO1")
    w2_reads(g, 1, False, SL)
    g.wait(vm="ost")
    g.flag_store(dWS, sFl, 0, ps + 1, vT[2], sT[1])
    if ps == 0:
        if opt.htouch == 1: htouch(g)
        if opt.touchat == 2: touch(g)
        w2_reads(g, 0, False, 0)
        g.wait(lg="all")
        cs_final(g, [(CS + 0, 0), (CS + 2, 0), (CS + 4, 0)], 0, X + 96, vA2, False)
    g.barrier()
    g.stamp("o published")

def unpack_res(g, fill=False):
    f = g.F if fill else g.e
    g.wait(vm="res0")
    for k in range(8):
        f(f"v_lshlrev_b32 v{ACC4[0]+2*k}, 16, v{vRES+k}")
        f(f"v_and_b32 v{ACC4[0]+2*k+1}, 0xffff0000, v{vRES+k}")

def reduce_addr(g, inst, fill):
    f = g.F if fill else g.e
    f(f"v_add_u32 v{vT[0]}, s{sBv}, v{vL16}")
    for i in (1, 2, 3):
        f(f"s_xor_b32 s{sT[4]}, s{sV}, {i}")
        f(f"s_mul_i32 s{sT[4]}, s{sT[4]}, {BLK}")
        f(f"s_add_u32 s{sT[4]}, s{sT[4]}, {RB + (i-1)*4096}")
        f(f"v_add_u32 v{vT[i]}, s{sT[4]}, v{vL16}")
    f(f"s_lshl_b32 s{sT[2]}, s{sTBO}, 15"); f(f"s_add_u32 s{sT[2]}, s{sT[2]}, {XBUF + inst_off(inst)}")
    f(f"s_lshl_b32 s{sT[1]}, s{sCTO}, 11"); f(f"s_add_u32 s{sT[0]}, s{sT[2]}, s{sT[1]}")
    f(f"s_lshl_b32 s{sT[1]}, s{sC}, 9"); f(f"s_add_u32 s{sT[1]}, s{sT[1]}, s{sT[2]}")
    f(f"s_and_b32 s{sT[2]}, s{sV}, 1"); f(f"s_lshl_b32 s{sT[2]}, s{sT[2]}, 3"); f(f"s_add_u32 s{sT[1]}, s{sT[1]}, s{sT[2]}")
    f(f"s_add_u32 s{sT[1]}, s{sT[1]}, {SL}")
    f(f"s_lshl_b32 s{sT[2]}, s{sTBO}, 7"); f(f"s_lshl_b32 s{sT[4]}, s{sCTO}, 2"); f(f"s_add_u32 s{sT[2]}, s{sT[2]}, s{sT[4]}")
    f(f"s_add_u32 s{sT[2]}, s{sT[2]}, {XF}")

def acc_out(g, i):
    def f():
        g.flush()
        for q in range(4):
            g.Fds(f"ds_write_b128 v{vT[0]}, {vr(ACC4[i]+4*q,4)} offset:{(i-1)*4096+q*1024}", None, g.mf + 2 + q)
    return f

def reduce_store(g, inst, barrier_vm=None, after_reads=None):
    e = g.e
    xsc = "sc1" if (inst == 1 and opt.osc & 2) else g.sc
    g.barrier(vm=barrier_vm)
    for q in range(4):
        for i in (1, 2, 3):
            g.ds(f"ds_read_b128 {vr(ACC4[i]+4*q,4)}, v{vT[i]} offset:{q*1024}", f"rd{q}")
    a = ACC4[0]
    e(f"v_mov_b32 v{vT[4]}, 0"); e(f"v_mov_b32 v{vT[5]}, 0")
    for q in range(4):
        g.wait(lg=f"rd{q}")
        for h in (0, 2):
            o = 4*q + h
            e(f"v_pk_add_f32 {vr(a+o,2)}, {vr(a+o,2)}, {vr(ACC4[1]+o,2)}")
            e(f"v_pk_add_f32 {vr(ACC4[2]+o,2)}, {vr(ACC4[2]+o,2)}, {vr(ACC4[3]+o,2)}")
        for h in (0, 2):
            o = 4*q + h
            e(f"v_pk_add_f32 {vr(a+o,2)}, {vr(a+o,2)}, {vr(ACC4[2]+o,2)}")
        for h in (0, 2):
            o = 4*q + h
            e(f"v_cvt_pk_bf16_f32 v{vRES+o//2}, v{a+o}, v{a+o+1}")
        if q & 1:
            f = q >> 1
            if inst == 4:
                g.vm(f"buffer_store_dwordx4 {vr(vRES+4*f,4)}, v{vRow}, {srd(dOUT)}, 0 offen offset:{32*f}")
            else:
                g.vm(f"buffer_store_dwordx4 {vr(vRES+4*f,4)}, v{vL16}, {srd(dWSB)}, s{sT[0]} offen offset:{1024*f} {xsc}")
        if inst != 4:
            for k in (2*q, 2*q + 1):
                e(f"v_dot2c_f32_bf16 v{vT[4]}, s{sBF1}, v{vRES+k}")
                e(f"v_dot2c_f32_bf16 v{vT[5]}, v{vRES+k}, v{vRES+k}")
    if inst == 4: return
    e(f"v_permlane32_swap_b32 v{vT[4]}, v{vT[5]}")
    e(f"v_add_f32 v{vT[4]}, v{vT[4]}, v{vT[5]}")
    g.vm(f"buffer_store_dword v{vT[4]}, v{vStW}, {srd(dWSB)}, s{sT[1]} offen {xsc}", "xst")
    if after_reads: after_reads()
    g.wait(vm="xst")
    g.flag_store(dWSB, sT[2], 0, inst, vT[5], sT[3])

def phase2(g, ps):
    e = g.e
    for b in range(2):
        e(f"s_xor_b32 s{sT[0]}, s{sTBO}, {b}"); e(f"s_mul_i32 s{sT[0]}, s{sT[0]}, {4*SL}")
        e(f"s_lshl_b32 s{sT[1]}, s{sV}, 13"); e(f"s_add_u32 s{sT[0]}, s{sT[0]}, s{sT[1]}")
        e(f"s_add_u32 s{sT[0]}, s{sT[0]}, {obase(ps)}")
        e(f"v_add_u32 v{vA0+b}, s{sT[0]}, v{vL16}")
    reduce_addr(g, 2*ps + 1, False)
    e(f"s_add_u32 s{sT[3]}, s{sFc}, {OF}")
    g.set_need(ps + 1)
    g.poll_loop(vP8, sT[3])
    g.stamp("o flags seen")
    lorder = [2*ks + 1 for ks in range(8)] + [2*ks for ks in range(8)]
    def ol(k):
        n = lorder[k]
        so, im = g.soff((n >> 1) * 1024)
        g.vm(f"buffer_load_dwordx4 {vr(X+4*n,4)}, v{vA0+(n&1)}, {srd(dWSB)}, {so} offen offset:{im} sc1", f"o{n}")
    for k in range(opt.n2): ol(k)
    order = [(ks, 1, a) for ks in range(8) for a in (0, 1)] + [(ks, 0, a) for ks in range(5) for a in (0, 1)] \
          + [(ks, 0, 1) for ks in (5, 6, 7)] + [(ks, 0, 0) for ks in (5, 6, 7)]
    steps = []
    k = opt.n2
    for idx, (ks, b, a) in enumerate(order):
        i = 2*b + a
        pre = [lambda n=2*ks+b: g.wait(vm=f"o{n}")]
        c = 0 if (ks == 0 and i != 0) else None
        post = []
        if idx % 2 == 0 and k < 16:
            post.append(lambda k=k: ol(k)); k += 1
        if idx == 16: post.append(acc_out(g, 2))
        if idx == 22: post.append(acc_out(g, 3))
        if idx == 28: post.append(acc_out(g, 1))
        steps.append((pre, MF(ACC4[i], w2reg(2*ks + a), X + 4*(2*ks+b), c), post))
    if ps == 0 and not opt.noT and opt.tmode == 0:
        g.dma_tile(dWG, vDg, sW3, 0, 16*3584, sLv, T0, "dT", mode="bg")
        g.dma_tile(dWU, vDg, sW3, 0, 16*3584, sLv, T1, "dT", mode="bg")
    g.bg_period = 2; g.bg_next = g.mf + 19
    g.stream(steps)
    g.flush(); g.bg_flush()
    g.stamp("p2 gemm done")
    reduce_store(g, 2*ps + 1)
    g.stamp("x published")

def h_epilogue(g, accG, accU, n, stores, earliest, c1, sd, start=0):
    first = True
    for k0 in range(start, n, 4):
        ks = range(k0, k0 + 4) if not (opt.xp & 4) else range(k0, k0 + 1)
        for k in ks:
            g.F(f"v_mul_f32 v{accG+k}, v{c1}, v{accG+k}", earliest if first else 0); first = False
        for k in ks: g.F(f"v_exp_f32 v{accG+k}, v{accG+k}")
        for k in ks: g.F(f"v_fma_f32 v{accG+k}, v{accG+k}, v{sd}, v{sd}")
        for k in ks: g.F(f"v_rcp_f32 v{accG+k}, v{accG+k}")
        for k in ks: g.F(f"v_mul_f32 v{accU+k}, v{accU+k}, v{accG+k}")
        for k in (k0, k0 + 2): g.F(f"v_cvt_pk_bf16_f32 v{accG+k//2}, v{accU+k}, v{accU+k+1}")
        if k0 % 8 == 4:
            t, tag = stores[k0 // 8]
            g.Fvm(t, tag)

def phase34(g, ps):
    e = g.e
    vXE2, vC2, vSD2 = vT[0], vT[1], vT[2]
    hsc = "sc1" if (ps == 0 and not opt.htouch) else g.sc
    e(f"s_lshr_b32 s{sT[0]}, s{sJ}, 3"); e(f"s_mul_i32 s{sT[0]}, s{sT[0]}, {SL}")
    e(f"s_bfe_u32 s{sT[1]}, s{sJ}, 0x20001")
    e(f"s_lshl_b32 s{sT[2]}, s{sT[1]}, 11"); e(f"s_add_u32 s{sT[0]}, s{sT[0]}, s{sT[2]}")
    e(f"s_add_u32 s{sT[0]}, s{sT[0]}, {HBUF + inst_off(ps)}")
    e(f"s_mul_i32 s{sH1}, s{sTB3}, {4*SL}"); e(f"s_add_u32 s{sH1}, s{sH1}, s{sT[0]}")
    e(f"s_xor_b32 s{sT[3]}, s{sTB3}, 4"); e(f"s_mul_i32 s{sH2}, s{sT[3]}, {4*SL}"); e(f"s_add_u32 s{sH2}, s{sH2}, s{sT[0]}")
    e(f"s_add_u32 s{sH2}, s{sH2}, {12*1024}")
    e(f"s_lshl_b32 s{sT[2]}, s{sT[1]}, 10"); e(f"s_sub_u32 s{sPS}, s{sH1}, s{sT[2]}"); e(f"s_add_u32 s{sPS}, s{sPS}, 8192")
    e(f"s_lshr_b32 s{sT[0]}, s{sJ}, 3"); e(f"s_lshl_b32 s{sT[0]}, s{sT[0]}, 6"); e(f"s_lshl_b32 s{sT[2]}, s{sT[1]}, 3"); e(f"s_add_u32 s{sT[0]}, s{sT[0]}, s{sT[2]}")
    e(f"s_and_b32 s{sT[2]}, s{sV}, 1"); e(f"s_lshl_b32 s{sT[2]}, s{sT[2]}, 2"); e(f"s_add_u32 s{sT[0]}, s{sT[0]}, s{sT[2]}")
    e(f"s_add_u32 s{sT[0]}, s{sT[0]}, {HF}")
    e(f"s_lshr_b32 s{sT[2]}, s{sTB3}, 1"); e(f"s_lshl_b32 s{sT[2]}, s{sT[2]}, 8"); e(f"s_add_u32 s{sHF1}, s{sT[0]}, s{sT[2]}")
    e(f"s_xor_b32 s{sT[2]}, s{sT[2]}, 512"); e(f"s_add_u32 s{sHF2}, s{sT[0]}, s{sT[2]}"); e(f"s_add_u32 s{sHF2}, s{sHF2}, 32")
    e(f"s_lshl_b32 s{sHFc}, s{sFc}, 1"); e(f"s_add_u32 s{sHFc}, s{sHFc}, {HF}"); e(f"s_add_u32 s{sHFd}, s{sHFc}, 32")
    e(f"s_lshr_b32 s{sPS2}, s{sJ}, 1"); e(f"s_mul_i32 s{sPS2}, s{sPS2}, {SL}"); e(f"s_add_u32 s{sPS2}, s{sPS2}, s{sLv}")
    def hst(reg, so, im): return f"buffer_store_dwordx4 {vr(reg,4)}, v{vL16}, {srd(dWS)}, s{so} offen offset:{im} {hsc}"
    done = set()
    def hpoll(sreg, tag):
        def f():
            while tag not in done: g.fq.popleft().fn()
            g.poll_issue(vP8, sreg, "hp")
        return f
    def hflag(sreg, n, tag, delay):
        def later():
            g.fq.appendleft(Fill(lambda: (g.flag_store(dWS, sreg, 0, 2*ps + n, vT[5], sT[5]), done.add(tag)), 3, 0))
            g.fq.appendleft(Fill(lambda: g.wait(vm=tag), 1, g.mf + delay))
        g.Ffn(later, 0)
    GU = [(vL16, None, T0, 1024, 0), (vL16, None, T1, 1024, 0)]
    MXA = (vLT2, None, 0, 1024, 0)
    MXB = (vLA, None, 0, 1024, 0)
    ack = 14 if (hsc == "" and ps) else opt.ack0
    def hl(n):
        if ps == 1 and opt.xp & 8: return lambda: None
        so, im = g.soff((n >> 1) * 1024)
        return lambda: g.vm(f"buffer_load_dwordx4 {vr(X+4*(n % 28),4)}, v{vA0 + (n & 1)}, {srd(dWSB)}, {so} offen offset:{im} sc1", f"h{n}_")
    LD = opt.lead if ps else opt.lead0
    def x2load(j):
        if ps == 1 and opt.xp & 16: return lambda: None
        so, im = g.soff(j * 1024)
        return lambda: g.vm(f"buffer_load_dwordx4 {vr(X+4*j,4)}, v{vA1}, {srd(dWS)}, {so} offen offset:{im} sc1", f"y{j}")
    posts1 = {}
    def start():
        lst = load_x(g, 2*ps + 1, sTB3, True, after_poll=(lambda: g.e('s_barrier')) if ps == 0 else None, stbase=B1)
        lst[-6:-6] = [lambda i=i: stload(g, i, vA1, B1 + 16, "st2") for i in range(4)]
        return lst
    nl = 28 - opt.n0 + 8
    holder = []
    k = 0; nx = 0
    while True:
        m = (k * opt.lrate) // 4
        if m >= 84: break
        if k < nl: posts1.setdefault(("m", m), []).append(lambda k=k: holder[k]())
        else:
            assert m >= 3*nx + 2
            posts1.setdefault(("m", m), []).append(x2load(nx)); nx += 1
        k += 1
    posts1["xe"] = [lambda: e(f"v_mov_b32 v{vXE}, v{vXE2}")]
    def hook1():
        stats_fill(g, 3, B1, "st", vXE, vC1, vSD, earliest=g.mf + 40)
        stats_fill(g, 3, B1 + 16, "st2", vXE2, vC2, vSD2, zero=False, earliest=g.mf + 66)
        g.mark()
    posts3 = {j: [x2load(j + nx)] for j in range(28 - nx)}
    def hook3():
        g.stamp("seg12 done")
        m0 = g.mf
        h_epilogue(g, B0, B0+16, 16, [(hst(B0, sH1, 0), None), (hst(B0+4, sH1, 1024), None)], g.mf + 3, vC1, vSD)
        h_epilogue(g, B2, B2+8, 8, [(hst(B2, sPS, 0), "h1")], 0, vC1, vSD)
        g.bg_next = m0 + (opt.mxdelay2 if ps else opt.mxdelay); g.bg_period = 2
        g.dma_tile(dWS, vL16, sPS2, MXF, 1024, sLv, SA, "dM", mode="bg", flags="sc1")
        if ps == 0 and opt.w4s3: w4setup()
    if ps == 0 and opt.pfw4 >= 0:
        (posts1 if opt.pfw4 < 28 else posts3).setdefault(opt.pfw4 % 28, []).append(lambda: g.prefetch(dWS, WDF, 12544, vA2, sT[0], flags="sc1"))
    posts4 = {j: [] for j in range(28)}
    posts4[28 - LD - 5].append(hpoll(sHFc, "h1"))
    posts4[28 - LD - 1].append(lambda: g.poll_check(vP8, sHFc, "hp", 2*ps + 2))
    for n in range(LD): posts4[28 - LD + n].append(hl(n))
    def hook4():
        g.stamp("seg3 done")
        g.flush()
        if ps == 0:
            cs_final(g, [(CS + 6, 0)], 512, B2, vA2, True)
            g.mark()
        g.F(f"s_mul_i32 s{sT[1]}, s{sV}, {SL}"); g.F(f"s_add_u32 s{sT[1]}, s{sT[1]}, {HBUF + inst_off(ps)}")
        for b in range(2):
            g.F(f"s_xor_b32 s{sT[0]}, s{sTBO}, {b}"); g.F(f"s_mul_i32 s{sT[0]}, s{sT[0]}, {4*SL}")
            g.F(f"s_add_u32 s{sT[0]}, s{sT[0]}, s{sT[1]}")
            g.F(f"v_add_u32 v{vA0+b}, s{sT[0]}, v{vL16}")
        h_epilogue(g, B1, B1+16, 8, [(hst(B1, sH2, 0), None)], g.mf + 3, vC2, vSD2)
        hflag(sHF1, 2, "h1", 0)
        h_epilogue(g, B1, B1+16, 16, [None, (hst(B1+4, sH2, 1024), "h2")], 0, vC2, vSD2, start=8)
        unpack_res(g, True)
        g.F(f"s_add_u32 s{sH2}, s{sH2}, 8192")
        hflag(sHF2, 1, "h2", ack - 4)
    def w4setup():
        e(f"s_mul_i32 s{sT[0]}, s{sCTO}, {112*1024}"); e(f"s_add_u32 s{sT[0]}, s{sT[0]}, {WDF}"); e(f"v_add_u32 v{vA3}, s{sT[0]}, v{vL16}")
        e(f"s_xor_b32 s{sT[0]}, s{sCTO}, 1"); e(f"s_mul_i32 s{sT[0]}, s{sT[0]}, {112*1024}"); e(f"s_add_u32 s{sT[0]}, s{sT[0]}, {WDF}")
        e(f"v_add_u32 v{vT[4]}, s{sT[0]}, v{vL16}")
        e(f"s_bfe_u32 s{sT[0]}, s{sP}, 0x10001"); e(f"s_lshl_b32 s{sT[0]}, s{sT[0]}, 10")
        e(f"s_lshl_b32 s{sT[2]}, s{sV}, 13"); e(f"s_add_u32 s{sT[2]}, s{sT[2]}, s{sT[0]}")
        e(f"s_xor_b32 s{sT[3]}, s{sT[2]}, 1024")
        e(f"s_lshl_b32 s{sT[4]}, s{sV}, 12")
        for kk in range(28):
            if kk < 8: pre1, im = [f"s_lshl_b32 s{sBG}, s{sT[3]}, 1", f"s_add_u32 s{sBG}, s{sBG}, {(kk>>1)*4096}"], (kk & 1) * 1024
            elif kk < 12: pre1, im = [f"s_add_u32 s{sBG}, s{sT[3]}, {64*1024 + (kk-8)*2048}"], 0
            elif kk < 20: pre1, im = [f"s_lshl_b32 s{sBG}, s{sT[2]}, 1", f"s_add_u32 s{sBG}, s{sBG}, {((kk-12)>>1)*4096}"], (kk & 1) * 1024
            else:
                sl = (kk - 20) >> 1
                if kk & 1 == 0: pre1, im = [f"s_add_u32 s{sBG}, s{sT[2]}, {64*1024 + sl*2048}"], 0
                else: pre1, im = [f"s_add_u32 s{sBG}, s{sT[4]}, {96*1024 + sl*1024}"], 0
            for a in range(2 - 2*opt.now4):
                g.BG(pre1 if a == 0 else [], f"buffer_load_dwordx4 {R(W4+4*(2*kk+a),4)}, v{vA3 if a == 0 else vT[4]}, {srd(dWSB)}, s{sBG} offen offset:{im} sc1 {'nt' if opt.nt & 2 else ''}", f"w4_{kk}")
    def gate4():
        g.wait(vm="dM"); e("s_barrier")
    S1 = dict(tiles=GU + [MXA], accs=[B0, B0+16, B2], xa=False, css=[CS+0, CS+2, CS+4], xtag="x", posts=posts1, hook=hook1)
    S3 = dict(tiles=GU, accs=[B1, B1+16], xa=False, css=[CS+0, CS+2], xtag="y", posts=posts3, hook=hook3)
    S4 = dict(tiles=[MXA, MXB], accs=[B0, B0+16], xa=False, css=[CS+4, CS+6], posts=posts4, hook=hook4, gate=gate4)
    if ps == 0:
        pre, steps = gemm_chain(g, [S1, S3])
        for f in pre: f()
        holder += start()
        g.stream(steps); g.flush()
        e(f"v_add_u32 v{vA2}, s{sLv}, v{vLA}")
        cs_block(g, [(vA2, 0, 1024, None, "dM")], [B0])
        cs_publish(g, [B0], 512, vA2)
        g.wait(lg="all")
        if not opt.w4s3: w4setup()
        g.bg_next = g.mf; g.bg_period = opt.bg3
        pre, steps = gemm_chain(g, [S4])
    else:
        pre, steps = gemm_chain(g, [S1, S3, S4])
    for f in pre: f()
    if ps: holder += start()
    g.stream(steps)
    g.flush()
    if ps == 0: g.barrier()
    g.stamp("seg4 done")
    m0 = g.mf
    h_epilogue(g, B0, B0+8, 8, [(hst(B0, sH2, 0), None)], g.mf + 2, vC2, vSD2)
    h_epilogue(g, B0+16, B0+24, 8, [(hst(B0+16, sH2, 1024), "h3")], 0, vC2, vSD2)
    hflag(sHF2, 2, "h3", ack)
    if ps == 0:
        g.bg_period = 2
        g.Ffn(lambda: g.bg_flush(), 1, m0 + 60)
        def kq():
            g.bg_period = 3
            g.dma_tile(dWS, vL16, sW1, W1F, 1024, sLv, SA, "dK", mode="bg", flags="sc1")
        g.Ffn(kq, 0)
    reduce_addr(g, 2*ps + 2, True)
    c1 = max(24 - LD, 5); c2 = 31 if (hsc == '' and ps) else opt.c20
    steps = []
    nxt = LD
    TG = opt.tailg
    order = [(kk, b, a) for kk in range(28 - TG) for b in (0, 1) for a in (0, 1)]
    for i in (3, 2, 1, 0): order += [(kk, i >> 1, i & 1) for kk in range(28 - TG, 28)]
    lorder = list(range(56 - 2*TG)) + [n for n in range(56 - 2*TG, 56) if n & 1] + [n for n in range(56 - 2*TG, 56) if not n & 1]
    for idx, (kk, b, a) in enumerate(order):
        i = 2*b + a
        n = idx >> 1
        pre = []
        if a == 0 or kk >= 28 - TG:
            pre.append(lambda m=2*kk+b: g.wait(vm=f"h{m}_"))
            if ps == 0: pre.append(lambda kk=kk: g.wait(vm=f"w4_{kk}"))
        post = []
        if idx & 1:
            if n == c1 - 5: post.append(hpoll(sHFd, "h2"))
            if n == c2 - 5: post.append(hpoll(sHFd, "h3"))
            if n == c1: post.append(lambda: g.poll_check(vP8, sHFd, "hp", 2*ps + 1))
            if n == c2: post.append(lambda: g.poll_check(vP8, sHFd, "hp", 2*ps + 2))
            k = 0
            while nxt < 56 and nxt <= n + LD + (4 if nxt >= 40 else 0) and k < 2 and (nxt < 40 or n >= c2) and (nxt < 24 or n >= c1):
                post.append(hl(lorder[nxt])); nxt += 1; k += 1
            if ps == 1 and n in (opt.wb, opt.wb2):
                def wbl2():
                    L = g.newlabel("Lwb")
                    e(f"s_cmp_lg_u32 s{sWID}, 124"); e(f"s_cbranch_scc1 {L}")
                    e("buffer_wbl2 sc1")
                    g.label(L)
                post.append(wbl2)
            if ps == 0 and n == 46:
                def pfv():
                    e(f"s_lshr_b32 s{sT[5]}, s{sWID}, 3"); e(f"s_mul_i32 s{sT[5]}, s{sT[5]}, {3*SL}")
                    e(f"s_and_b32 s{sBG}, s{sWID}, 7"); e(f"s_mul_i32 s{sBG}, s{sBG}, 7168"); e(f"s_add_u32 s{sT[5]}, s{sT[5]}, s{sBG}")
                    e(f"s_add_u32 s{sT[5]}, s{sT[5]}, {W1F + SL}")
                    e(f"v_lshlrev_b32 v{vA2}, 3, v{vL16}"); e(f"v_min_u32 v{vA2}, {55*128}, v{vA2}")
                    g.vm(f"buffer_load_dword {R(JUNK,1)}, v{vA2}, {srd(dWS)}, s{sT[5]} offen sc1")
                post.append(pfv)
        if kk == 27 and i: post.append(acc_out(g, i))
        c = 0 if (kk == 0 and i != 0) else None
        steps.append((pre, MF(ACC4[i], W4 + 4*(2*kk + a), X + 4*((2*kk+b) % 28), c), post))
    assert nxt == 56
    g.stream(steps)
    g.flush(); g.bg_flush()
    g.stamp("p4 gemm done")
    def vdma():
        g.barrier()
        g.dma_tile(dWS, vL16, sW1, W1F + SL, 1024, sLv, RB, "dV", flags="sc1")
    reduce_store(g, 2*ps + 2, after_reads=vdma if ps == 0 else None)
    g.stamp("x2 published")

def rest(g, slow):
    g.sc = "sc1" if slow else ""
    seq = [lambda: phase1c(g, 0), lambda: phase2(g, 0), lambda: phase34(g, 0),
           lambda: (phase1a(g, 1), phase1b(g, 1), phase1c(g, 1)), lambda: phase2(g, 1), lambda: phase34(g, 1)]
    for i, f in enumerate(seq):
        if i >= opt.stop: break
        f()
    e = g.e
    e(f"s_add_u32 s{sT[0]}, s{sE}, 17")
    e(f"v_mov_b32 v{vT[0]}, s{sT[0]}")
    e(f"s_lshl_b32 s{sT[1]}, s2, 2"); e(f"s_add_u32 s{sT[1]}, s{sT[1]}, s{sV}")
    e(f"s_cmp_lg_u32 s{sT[1]}, 0"); e(f"s_cselect_b32 s{sT[2]}, {BIG}, {EPOCH}")
    g.vm(f"buffer_store_dword v{vT[0]}, v{vL0}, {srd(dWS)}, s{sT[2]} offen sc1")
    if opt.stamps:
        g.stamp("end")
        e(f"v_writelane_b32 v0, s{sTO}, 63")
        e(f"s_lshl_b32 s{sT[1]}, s{sT[1]}, 8"); e(f"s_add_u32 s{sT[1]}, s{sT[1]}, {STAMP}")
        e(f"v_lshrrev_b32 v{vT[1]}, 2, v{vL16}")
        g.vm(f"buffer_store_dword v0, v{vT[1]}, {srd(dWS)}, s{sT[1]} offen")
    e("s_endpgm")
    g.flush_tail()

def build():
    g = G()
    prologue(g)
    phase1a(g, 0)
    phase1b(g, 0)
    placement_check(g)
    st = g.state(); ns = g.nstamp; mf = g.mf; bg = list(g.bg); pend = dict(g.pending); bn = g.bg_next
    assert not g.fq
    rest(g, False)
    g.label("L_fast_end")
    g.label("L_slow")
    g.set_state(st); g.nstamp = ns; g.mf = mf; g.bg = collections.deque(bg); g.pending = dict(pend); g.bg_next = bn
    g.e("s_nop 7")
    rest(g, True)
    g.label("L_end")
    g.e("s_endpgm")
    hdr = open(os.path.join(os.path.dirname(os.path.abspath(__file__)), "..", "cdna_kernels", NAME + ".s.ref")).read().split("\n")
    head = [l for l in hdr if l.startswith(";") and "@launch" not in l]
    out = "\n".join(head) + "\n; @launch grid=(256,1,1) block=(256,1,1) lds=163840\n"
    out += '.amdgcn_target "amdgcn-amd-amdhsa--gfx950"\n.text\n'
    out += f".globl {NAME}_kernel\n.p2align 8\n.type {NAME}_kernel,@function\n{NAME}_kernel:\n"
    out += g.text()
    out += f""".section .rodata,"a"
.p2align 6
.amdhsa_kernel {NAME}_kernel
  .amdhsa_next_free_vgpr 512
  .amdhsa_next_free_sgpr 102
  .amdhsa_accum_offset 256
  .amdhsa_group_segment_fixed_size 0
  .amdhsa_kernarg_size 80
  .amdhsa_user_sgpr_count 2
  .amdhsa_user_sgpr_kernarg_segment_ptr 1
  .amdhsa_system_sgpr_workgroup_id_x 1
.end_amdhsa_kernel
"""
    return out, g

if __name__ == "__main__":
    outp = None
    for a in sys.argv[1:]:
        if "=" in a:
            k, v = a.split("="); setattr(opt, k, int(v))
        else: outp = a
    txt, g = build()
    outp = outp or os.path.join(os.path.dirname(os.path.abspath(__file__)), "..", "cdna_kernels", NAME + ".s")
    open(outp, "w").write(txt)
    if opt.stamps: open(outp + ".names", "w").write("\n".join(g.names))
    print("wrote", outp, "instructions", sum(1 for i in g.ins if not i.label), "auto nops", g.nops_inserted, "stamps", g.nstamp)
```
